```python
import torch

def _softmax(x, axis=-1):
    return torch.softmax(x, dim=axis)
def _gelu(x):
    return torch.nn.functional.gelu(x, approximate="tanh")
def _silu(x):
    return torch.nn.functional.silu(x)
def _sigmoid(x):
    return torch.sigmoid(x)
def _layernorm(x, axis=-1, eps=1e-5):
    m = x.mean(dim=axis, keepdim=True)
    v = x.var(dim=axis, keepdim=True, unbiased=False)
    return (x - m) / torch.sqrt(v + eps)
def _scatter_add(tgt, idx, src, axis=0):
    return tgt.clone().index_add_(axis, idx, src)
def _segment_sum(src, seg, n):
    out = torch.zeros((n,) + src.shape[1:], dtype=src.dtype)
    return out.index_add_(0, seg, src)
def _pad(x, pw):
    flat = tuple(v for pair in reversed(pw) for v in pair)
    return torch.nn.functional.pad(x, flat)

kernel_name = 'interleave_layers__ssm_conv_s4__swiglu_ffn__prompt'

def setup_inputs():

    _w = (lambda a: (lambda t: t.to(torch.bfloat16) if t.is_floating_point() else t)(torch.as_tensor(a)))
    def _A_setup():
        B, L, D, N = 1, 2048, 512, 128
        A_re = -(lambda _x: torch.exp(torch.as_tensor(_x)))((lambda *s: torch.randn(*s, dtype=torch.bfloat16) * 1.6)(D, N))
        A_im = torch.pi * (lambda *s: torch.randn(*s, dtype=torch.bfloat16) * 0.2)(D, N)
        B_re = (lambda *s: torch.randn(*s, dtype=torch.bfloat16) * 0.2)(D, N)
        B_im = (lambda *s: torch.randn(*s, dtype=torch.bfloat16) * 0.2)(D, N)
        C_re = (lambda *s: torch.randn(*s, dtype=torch.bfloat16) * 0.2)(D, N)
        C_im = (lambda *s: torch.randn(*s, dtype=torch.bfloat16) * 0.2)(D, N)
        log_dt = (lambda *s: torch.randn(*s, dtype=torch.bfloat16) * 0.2)(D) * 0.5 - 4.0
        Dskip = (lambda *s: torch.randn(*s, dtype=torch.bfloat16) * 0.2)(D)
        return {
            "u": _w((lambda *s: torch.randn(*s, dtype=torch.bfloat16) * 0.05)(B, L, D)),
            "A_re": _w(A_re),
            "A_im": _w(A_im),
            "B_re": _w(B_re),
            "B_im": _w(B_im),
            "C_re": _w(C_re),
            "C_im": _w(C_im),
            "log_dt": _w(log_dt),
            "Dskip": _w(Dskip),
        }
    _A_in = _A_setup()

    def _B_setup():
        B, S, D, F = 1, 2048, 512, 1376
        return {
            "x": _w((lambda *s: torch.randn(*s, dtype=torch.bfloat16) * 0.05)(B, S, D)),
            "w_gate": _w((lambda *s: torch.randn(*s, dtype=torch.bfloat16) * 0.05)(D, F)),
            "w_up": _w((lambda *s: torch.randn(*s, dtype=torch.bfloat16) * 0.05)(D, F)),
            "w_down": _w((lambda *s: torch.randn(*s, dtype=torch.bfloat16) * 0.05)(F, D)),
        }
    _B_in = _B_setup()

    return {
        "A_u": _A_in["u"],
        "A_A_re": _A_in["A_re"],
        "A_A_im": _A_in["A_im"],
        "A_B_re": _A_in["B_re"],
        "A_B_im": _A_in["B_im"],
        "A_C_re": _A_in["C_re"],
        "A_C_im": _A_in["C_im"],
        "A_log_dt": _A_in["log_dt"],
        "A_Dskip": _A_in["Dskip"],
        "B_x": _B_in["x"],
        "B_w_gate": _B_in["w_gate"],
        "B_w_up": _B_in["w_up"],
        "B_w_down": _B_in["w_down"],
    }

def reference(A_u, A_A_re, A_A_im, A_B_re, A_B_im, A_C_re, A_C_im, A_log_dt, A_Dskip, B_x, B_w_gate, B_w_up, B_w_down):
    def _A_ref(u, A_re, A_im, B_re, B_im, C_re, C_im, log_dt, Dskip):
        Bsz, L, D = u.shape
        dt = torch.exp(log_dt)[:, None]
        A = A_re + 1j * A_im
        Bc = B_re + 1j * B_im
        Cc = C_re + 1j * C_im
        logdA = dt * A
        dB = dt * Bc
        l = (lambda x, dt: x.to(dt))(torch.arange(L), A_re.dtype)
        P = torch.exp(logdA[:, :, None] * l[None, None, :])
        K = torch.einsum("dn,dnl,dn->dl", Cc, P, dB).real
        L2 = 2 * L
        Kp = _pad(K, ((0, 0), (0, L)))
        up = (lambda x, *d: x.permute(*d))(u, 0, 2, 1)
        up = _pad(up, ((0, 0), (0, 0), (0, L)))
        Kf = (lambda x, axes=(-2,-1): torch.fft.rfft2(x.float(), dim=axes))(Kp[:, None, :], axes=(-2, -1))
        Uf = (lambda x, axes=(-2,-1): torch.fft.rfft2(x.float(), dim=axes))(up[:, :, None, :], axes=(-2, -1))
        Yf = Uf * Kf[None, :, :, :]
        y = (lambda x, s, axes=(-2,-1): torch.fft.irfft2(x, s=s, dim=axes).to(torch.bfloat16))(Yf, (1, L2), axes=(-2, -1))[:, :, 0, :L]
        y = (lambda x, *d: x.permute(*d))(y, 0, 2, 1) + u * Dskip[None, None, :]
        return y

    def _B_ref(x, w_gate, w_up, w_down):
        g = _silu(x @ w_gate)
        u = x @ w_up
        return (g * u) @ w_down

    x = A_u
    x = x + _A_ref(_layernorm(x, axis=-1), A_A_re, A_A_im, A_B_re, A_B_im, A_C_re, A_C_im, A_log_dt, A_Dskip)
    x = x + _B_ref(_layernorm(x, axis=-1), B_w_gate, B_w_up, B_w_down)
    x = x + _A_ref(_layernorm(x, axis=-1), A_A_re, A_A_im, A_B_re, A_B_im, A_C_re, A_C_im, A_log_dt, A_Dskip)
    x = x + _B_ref(_layernorm(x, axis=-1), B_w_gate, B_w_up, B_w_down)
    return x
```

```python
import re

TRANS = ("v_exp_f32", "v_log_f32", "v_rcp_f32", "v_rsq_f32", "v_sqrt_f32", "v_sin_f32", "v_cos_f32",
         "v_rcp_iflag_f32")

REG_RE = re.compile(r"^(-|abs\(|-abs\(|\|)?([vas])(\d+|\[(\d+):(\d+)\])\)?\|?$")


def parse_reg(tok):
    tok = tok.strip()
    if tok in ("vcc", "vcc_lo", "vcc_hi"):
        return ("s", [106, 107])
    if tok in ("exec", "exec_lo", "exec_hi"):
        return ("s", [126, 127])
    if tok == "m0":
        return ("s", [124])
    m = REG_RE.match(tok)
    if not m:
        return None
    kind = m.group(2)
    if m.group(4) is not None:
        lo, hi = int(m.group(4)), int(m.group(5))
        return (kind, list(range(lo, hi + 1)))
    return (kind, [int(m.group(3))])


def v(i, n=1):
    return f"v{i}" if n == 1 else f"v[{i}:{i + n - 1}]"


def a(i, n=1):
    return f"a{i}" if n == 1 else f"a[{i}:{i + n - 1}]"


def s(i, n=1):
    return f"s{i}" if n == 1 else f"s[{i}:{i + n - 1}]"


def mfma_passes(op):
    if "32x32x16" in op or "32x32x8" in op or "32x32x32" in op:
        return ("xdl", 8)
    if "16x16x32" in op or "16x16x16" in op or "16x16x64" in op:
        return ("xdl", 4)
    if op == "v_mfma_f32_16x16x4_f32":
        return ("sgemm", 8)
    if op == "v_mfma_f32_32x32x2_f32":
        return ("sgemm", 16)
    raise ValueError(op)


class Inst:
    __slots__ = ("pos", "cls", "op", "wv", "rv", "ws", "rs", "mf", "srcc", "stdata", "dpp")


class Kernel:
    def __init__(self, name):
        self.name = name
        self.lines = []
        self.hist = []
        self.pos = 0
        self.maxv = 0
        self.maxa = -1
        self.maxs = 0
        self.nlabel = 0

    def raw(self, text):
        self.lines.append(text)

    def comment(self, text):
        self.lines.append(f"    ; {text}")

    def label(self, name):
        self.lines.append(f"{name}:")

    def newlabel(self, stem="L"):
        self.nlabel += 1
        return f"{self.name}_{stem}{self.nlabel}"

    def fence(self, n=16):
        self.nop(n)

    def nop(self, n):
        while n > 0:
            c = min(n, 16)
            self.lines.append(f"    s_nop {c - 1}")
            self.pos += c
            n -= c

    def _parse(self, text):
        t = text.split(";")[0].strip()
        sp = t.split(None, 1)
        op = sp[0]
        rest = sp[1] if len(sp) > 1 else ""
        ops = []
        depth = 0
        cur = ""
        for ch in rest:
            if ch == "[":
                depth += 1
            if ch == "]":
                depth -= 1
            if ch == "," and depth == 0:
                ops.append(cur.strip())
                cur = ""
            else:
                cur += ch
        if cur.strip():
            ops.append(cur.strip())
        mods = []
        if ops:
            parts = ops[-1].split()
            ops[-1] = parts[0]
            mods = parts[1:]
        return op, ops, mods

    def __call__(self, text):
        op, ops, mods = self._parse(text)
        I = Inst()
        I.op = op
        I.wv, I.rv, I.ws, I.rs = set(), set(), set(), set()
        I.mf = None
        I.srcc = set()
        I.stdata = set()
        I.dpp = any(m.startswith(("row_", "quad_perm", "wave_")) for m in mods) or op.endswith("_dpp")
        regs = [parse_reg(o) for o in ops]

        def key(r):
            return [(i + 1000) if r[0] == "a" else i for i in r[1]]

        def add_read(r):
            if r is None:
                return
            if r[0] == "s":
                I.rs.update(r[1])
            else:
                I.rv.update(key(r))

        def add_write(r):
            if r is None:
                return
            if r[0] == "s":
                I.ws.update(r[1])
            else:
                I.wv.update(key(r))

        for r in regs:
            if r is None:
                continue
            if r[0] == "v":
                self.maxv = max(self.maxv, max(r[1]))
            elif r[0] == "a":
                self.maxa = max(self.maxa, max(r[1]))
            elif r[0] == "s" and max(r[1]) < 102:
                self.maxs = max(self.maxs, max(r[1]))

        base = op.replace("_e32", "").replace("_e64", "").replace("_dpp", "")
        if op.startswith("v_mfma"):
            I.cls = "mfma"
            I.mf = mfma_passes(op)
            add_write(regs[0])
            for r in regs[1:]:
                add_read(r)
            if regs[3] is not None:
                I.srcc = set(key(regs[3]))
        elif op.startswith("v_"):
            I.cls = "trans" if base in TRANS else "valu"
            if base.startswith("v_permlane") and "swap" in base:
                for r in regs[:2]:
                    add_read(r)
                    add_write(r)
            elif base.startswith("v_cmp"):
                add_write(regs[0])
                for r in regs[1:]:
                    add_read(r)
            elif base in ("v_add_co_u32", "v_sub_co_u32", "v_addc_co_u32", "v_subb_co_u32"):
                add_write(regs[0])
                add_write(regs[1])
                for r in regs[2:]:
                    add_read(r)
            else:
                add_write(regs[0])
                for r in regs[1:]:
                    add_read(r)
                if base in ("v_fmac_f32", "v_dot2c_f32_bf16", "v_pk_fmac_f16") or I.dpp or "sdwa" in op:
                    add_read(regs[0])
                if base == "v_cndmask_b32" and len(ops) == 3:
                    I.rs.update([106, 107])
        elif op.startswith(("buffer_", "global_", "flat_")):
            I.cls = "vmem"
            is_lds = "lds" in mods or "_lds_" in op
            if "load" in op and not is_lds:
                add_write(regs[0])
                for r in regs[1:]:
                    add_read(r)
                if "d16" in op:
                    add_read(regs[0])
            elif is_lds:
                for r in regs:
                    add_read(r)
                I.rs.add(124)
            else:
                for r in regs:
                    add_read(r)
                if op.startswith("buffer_"):
                    d = regs[0]
                else:
                    d = regs[1]
                if d is not None and len(d[1]) >= 3:
                    I.stdata = set(key(d))
        elif op.startswith("ds_"):
            I.cls = "ds"
            if op.startswith(("ds_read", "ds_bpermute", "ds_permute", "ds_swizzle")):
                add_write(regs[0])
                for r in regs[1:]:
                    add_read(r)
            else:
                for r in regs:
                    add_read(r)
        elif op.startswith("s_"):
            I.cls = "salu"
            if op.startswith(("s_cmp", "s_cbranch", "s_branch", "s_waitcnt", "s_barrier", "s_nop", "s_endpgm",
                              "s_setprio", "s_sleep")):
                for r in regs:
                    add_read(r)
            elif op.startswith("s_load"):
                add_write(regs[0])
                for r in regs[1:]:
                    add_read(r)
            else:
                add_write(regs[0])
                for r in regs[1:]:
                    add_read(r)
                if "saveexec" in op:
                    I.ws.update([126, 127])
        else:
            raise ValueError("unknown op " + op)

        need = self._required(I)
        if need > 0:
            self.nop(need)
        I.pos = self.pos
        if op == "s_nop":
            self.pos += int(ops[0]) + 1
        else:
            self.pos += 1
        self.hist.append(I)
        if len(self.hist) > 40:
            self.hist.pop(0)
        self.lines.append("    " + text)

    def _required(self, I):
        need = 0
        isvalu = I.cls in ("valu", "trans")
        base = I.op.replace("_e32", "").replace("_e64", "").replace("_dpp", "")
        for P in self.hist:
            dist = self.pos - P.pos - 1
            req = 0
            pvalu = P.cls in ("valu", "trans")
            if pvalu:
                if I.cls == "mfma" and (P.wv & I.rv):
                    req = max(req, 2)
                if I.dpp and (P.wv & I.rv):
                    req = max(req, 2)
                if base.startswith("v_permlane") and (P.wv & I.rv):
                    req = max(req, 2)
                if base in ("v_readfirstlane_b32", "v_readlane_b32") and (P.wv & I.rv):
                    req = max(req, 1)
                if P.cls == "trans" and I.cls in ("valu", "mfma") and (P.wv & I.rv):
                    req = max(req, 1)
                if P.cls == "trans" and I.cls in ("vmem", "ds") and (P.wv & I.rv):
                    req = max(req, 1)
                if P.ws:
                    if isvalu and (P.ws & I.rs):
                        req = max(req, 2)
                    if base in ("v_readlane_b32", "v_writelane_b32") and (P.ws & I.rs):
                        req = max(req, 4)
                    if I.cls == "vmem" and (P.ws & I.rs):
                        req = max(req, 5)
                    if I.cls == "salu" and (P.ws & I.rs):
                        req = max(req, 1)
                    if (P.ws & {126, 127}):
                        if I.dpp:
                            req = max(req, 5)
                        if I.cls == "mfma":
                            req = max(req, 4)
            if P.cls == "salu" and 124 in P.ws and 124 in I.rs and I.cls in ("vmem", "ds"):
                req = max(req, 1)
            if P.cls == "salu" and (P.ws & {126, 127}) and (I.dpp or base.startswith("v_permlane")):
                req = max(req, 1)
            if P.stdata and (P.stdata & I.wv):
                req = max(req, 2 if isvalu else 1)
            if P.cls == "mfma":
                kind, passes = P.mf
                idx = {2: 0, 4: 1, 8: 2, 16: 3}[passes]
                D = P.wv
                if I.cls == "mfma":
                    ikind, ipasses = I.mf
                    ab = I.rv - I.srcc if I.srcc else I.rv
                    if D & ab:
                        req = max(req, (5, 8, 12, 20)[idx] if kind == "xdl" else (4, 6, 10, 18)[idx])
                    if D & I.srcc:
                        if D == I.srcc and kind == ikind and passes == ipasses:
                            req = max(req, 2 if passes == 2 else 0)
                        else:
                            if kind == "xdl":
                                req = max(req, (4, 6, 10, 18)[idx])
                            else:
                                req = max(req, 0 if ikind == "xdl" else (2, 4, 8, 16)[idx])
                    elif D & I.wv:
                        req = max(req, (5, 8, 12, 20)[idx] if kind == "xdl" else (4, 6, 10, 18)[idx])
                else:
                    if (D & I.rv) or (D & I.wv):
                        req = max(req, (5, 8, 12, 20)[idx] if kind == "xdl" else (4, 6, 10, 18)[idx])
                    if kind == "xdl" and isvalu and (P.srcc & I.wv):
                        req = max(req, (1, 3, 7, 15)[idx])
            if req > dist:
                need = max(need, req - dist)
        return need

    def text(self):
        out = [f".globl {self.name}", ".p2align 8", f".type {self.name},@function", f"{self.name}:"]
        out += self.lines
        return "\n".join(out) + "\n"

    def descriptor(self, vgpr=None, sgpr=None):
        nv = self.maxv + 1
        acc = (nv + 3) // 4 * 4
        tot = acc + (self.maxa + 1) if self.maxa >= 0 else nv
        if vgpr is not None:
            tot = max(tot, vgpr)
        ns = max(self.maxs + 1, 16) if sgpr is None else sgpr
        return f""".amdhsa_kernel {self.name}
  .amdhsa_next_free_vgpr {tot}
  .amdhsa_next_free_sgpr {ns}
  .amdhsa_accum_offset {acc}
  .amdhsa_group_segment_fixed_size 0
  .amdhsa_kernarg_size 128
  .amdhsa_user_sgpr_count 2
  .amdhsa_user_sgpr_kernarg_segment_ptr 1
  .amdhsa_system_sgpr_workgroup_id_x 1
.end_amdhsa_kernel
"""

    def srd(self, dst, base_lo, off, size):
        if off:
            self(f"s_add_u32 {s(dst)}, {s(base_lo)}, 0x{off:x}")
            self(f"s_addc_u32 {s(dst + 1)}, {s(base_lo + 1)}, 0")
        else:
            self(f"s_mov_b32 {s(dst)}, {s(base_lo)}")
            self(f"s_mov_b32 {s(dst + 1)}, {s(base_lo + 1)}")
        self(f"s_mov_b32 {s(dst + 2)}, 0x{size:x}")
        self(f"s_mov_b32 {s(dst + 3)}, 0x00020000")
```

```python
from asmlib import Kernel, a, s, v
from gen import *


class Cnt:
    def __init__(self, k, name, maxn):
        self.k, self.name, self.maxn = k, name, maxn
        self.q = []

    def issue(self, tag):
        if len(self.q) >= self.maxn:
            self.wait_n(self.maxn - 1)
        self.q.append(tag)

    def wait_n(self, n):
        if len(self.q) > n:
            self.k(f"s_waitcnt {self.name}({n})")
            self.q = self.q[len(self.q) - n:] if n else []

    def wait(self, tag):
        if tag in self.q:
            i = max(j for j, t in enumerate(self.q) if t == tag)
            self.wait_n(len(self.q) - 1 - i)

    def drain(self):
        self.wait_n(0)


def unpack(k, dst, src, hi):
    if hi:
        k(f"v_and_b32 {v(dst)}, 0xffff0000, {v(src)}")
    else:
        k(f"v_lshlrev_b32 {v(dst)}, 16, {v(src)}")


def round_pairs(k, regs, tmp):
    for i in range(0, len(regs), 2):
        k(f"v_cvt_pk_bf16_f32 {v(tmp)}, {v(regs[i])}, {v(regs[i + 1])}")
        unpack(k, regs[i], tmp, 0)
        unpack(k, regs[i + 1], tmp, 1)


def ln_stats(k, S, n, MB, RI, tmp):
    for j in range(n):
        k(f"v_mul_f32 {v(S + 2 * j)}, {hx(1.0 / D)}, {v(S + 2 * j)}")
        k(f"v_mul_f32 {v(S + 2 * j + 1)}, {hx(1.0 / D)}, {v(S + 2 * j + 1)}")
        k(f"v_fma_f32 {v(S + 2 * j + 1)}, -{v(S + 2 * j)}, {v(S + 2 * j)}, {v(S + 2 * j + 1)}")
        k(f"v_max_f32 {v(S + 2 * j + 1)}, 0, {v(S + 2 * j + 1)}")
        k(f"v_cvt_pk_bf16_f32 {v(tmp)}, {v(S + 2 * j)}, {v(S + 2 * j + 1)}")
        unpack(k, MB + j, tmp, 0)
        unpack(k, RI + j, tmp, 1)
        k(f"v_add_f32 {v(RI + j)}, {hx(1e-5)}, {v(RI + j)}")
    round_pairs(k, [RI + j for j in range(n)], tmp)
    for j in range(n):
        k(f"v_sqrt_f32 {v(RI + j)}, {v(RI + j)}")
    round_pairs(k, [RI + j for j in range(n)], tmp)
    for j in range(n):
        k(f"v_rcp_f32 {v(RI + j)}, {v(RI + j)}")


KOFF = 512
UOFF = KOFF + KR_CH
UST = 4640
CONV_LDS = UOFF + 8 * UST


def gen_conv(name, ws_xin, ws_st, ws_xout):
    k = Kernel(name)
    done = f"{name}_done"
    k("s_load_dwordx2 s[4:5], s[0:1], 120")
    k("s_load_dwordx2 s[6:7], s[0:1], 64")
    k(f"s_cmp_ge_u32 s2, {D}")
    k(f"s_cbranch_scc1 {done}")
    X, H = 4, 8
    S = 16
    MB, RI = 32, 40
    XF = 48
    TMP = 56
    k("v_lshlrev_b32 v1, 4, v0")
    k("v_lshlrev_b32 v2, 6, v0")
    k("v_and_b32 v3, 63, v0")
    k("v_lshlrev_b32 v3, 4, v3")
    k("v_readfirstlane_b32 s24, v0")
    k("s_lshr_b32 s24, s24, 6")
    k("s_lshl_b32 s26, s2, 12")
    k("s_mul_i32 s27, s2, 9216")
    k("s_lshr_b32 s28, s2, 1")
    k("s_lshl_b32 s28, s28, 2")
    k("s_waitcnt lgkmcnt(0)")
    k("s_load_dword s29, s[6:7], s28")
    k(f"s_add_u32 s30, s26, 0x{ws_xin:x}")
    k("s_add_u32 s8, s4, s30")
    k("s_addc_u32 s9, s5, 0")
    k("s_mov_b32 s10, 4096")
    k("s_mov_b32 s11, 0x00020000")
    k.srd(12, 4, ws_st, ST_BYTES)
    k(f"s_add_u32 s30, s27, 0x{WS_KR:x}")
    k("s_add_u32 s16, s4, s30")
    k("s_addc_u32 s17, s5, 0")
    k(f"s_mov_b32 s18, {KR_CH}")
    k("s_mov_b32 s19, 0x00020000")
    k(f"s_add_u32 s30, s26, 0x{ws_xout:x}")
    k("s_add_u32 s20, s4, s30")
    k("s_addc_u32 s21, s5, 0")
    k("s_mov_b32 s22, 4096")
    k("s_mov_b32 s23, 0x00020000")
    k(f"buffer_load_dwordx4 {v(X, 4)}, v1, s[8:11], 0 offen")
    for j in range(4):
        k(f"buffer_load_dwordx4 {v(S + 4 * j, 4)}, v2, s[12:15], 0 offen offset:{16 * j}")
    k("s_lshl_b32 s25, s24, 10")
    k(f"s_add_u32 m0, s25, {KOFF}")
    k("buffer_load_dwordx4 v3, s[16:19], s25 offen lds")
    k("s_add_u32 s25, s25, 4096")
    k(f"s_add_u32 m0, s25, {KOFF}")
    k("buffer_load_dwordx4 v3, s[16:19], s25 offen lds")
    k("s_cmp_lg_u32 s24, 0")
    k(f"s_cbranch_scc1 {name}_nok8")
    k("s_mov_b32 s25, 8192")
    k(f"s_mov_b32 m0, {KOFF + 8192}")
    k("buffer_load_dwordx4 v3, s[16:19], s25 offen lds")
    k.label(f"{name}_nok8")
    for r in range(4):
        k(f"v_mov_b32 {v(TMP + r)}, 0")
    k("v_lshrrev_b32 v1, 5, v0")
    k("v_and_b32 v2, 31, v0")
    k(f"v_mul_u32_u24 v1, {UST}, v1")
    k("v_cmp_eq_u32 vcc, 20, v2")
    k("v_mov_b32 v3, 276")
    k("v_cndmask_b32 v3, v2, v3, vcc")
    k("v_lshl_add_u32 v1, v3, 4, v1")
    k("v_cmp_gt_u32 vcc, 21, v2")
    k("s_and_saveexec_b64 s[30:31], vcc")
    k(f"ds_write_b128 v1, {v(TMP, 4)} offset:{UOFF}")
    k("s_mov_b64 exec, s[30:31]")
    k("s_waitcnt vmcnt(2)")
    ln_stats(k, S, 8, MB, RI, TMP + 4)
    for j in range(8):
        unpack(k, XF + j, X + j // 2, j & 1)
        k(f"v_sub_f32 {v(XF + j)}, {v(XF + j)}, {v(MB + j)}")
    round_pairs(k, [XF + j for j in range(8)], TMP + 4)
    for j in range(8):
        k(f"v_mul_f32 {v(XF + j)}, {v(XF + j)}, {v(RI + j)}")
    for j in range(4):
        k(f"v_cvt_pk_bf16_f32 {v(H + j)}, {v(XF + 2 * j)}, {v(XF + 2 * j + 1)}")
    k("v_lshlrev_b32 v1, 4, v0")
    k(f"ds_write_b128 v1, {v(H, 4)} offset:{UOFF + 320}")
    k("s_waitcnt lgkmcnt(0)")
    k("s_barrier")
    k(f"ds_read_b128 {v(H + 4, 4)}, v1 offset:{UOFF + 336}")
    k("v_and_b32 v2, 7, v0")
    k("v_lshrrev_b32 v3, 3, v0")
    k(f"v_lshlrev_b32 {v(TMP)}, 1, v2")
    k(f"v_mul_u32_u24 {v(TMP + 1)}, {UST - 2}, v3")
    k(f"v_add_u32 {v(TMP + 1)}, {v(TMP + 1)}, {v(TMP)}")
    k("v_cmp_lt_u32 vcc, v2, v3")
    k("v_cmp_gt_u32 s[30:31], 64, v0")
    k("s_and_b64 vcc, vcc, s[30:31]")
    k("s_and_saveexec_b64 s[30:31], vcc")
    k(f"ds_read_u16 {v(TMP + 2)}, {v(TMP)} offset:{UOFF + 320}")
    k("s_waitcnt lgkmcnt(0)")
    k(f"ds_write_b16 {v(TMP + 1)}, {v(TMP + 2)} offset:{UOFF + 19 * 16 + 16}")
    k("s_mov_b64 exec, s[30:31]")
    k("s_waitcnt lgkmcnt(0)")
    T2 = 16
    for r in range(1, 8):
        sidx = r // 2
        dst = T2 + 4 * (r - 1)
        if r == 4:
            src = H + 2
        elif r & 1:
            for j in range(4):
                k(f"v_alignbit_b32 {v(dst + j)}, {v(H + sidx + j + 1)}, {v(H + sidx + j)}, 16")
            src = dst
        else:
            for j in range(4):
                k(f"v_mov_b32 {v(dst + j)}, {v(H + sidx + j)}")
            src = dst
        k(f"ds_write_b128 v1, {v(src, 4)} offset:{UOFF + r * UST + 320}")
    VA, VB = 12, 13
    k("v_and_b32 v2, 15, v0")
    k("v_bfe_u32 v3, v0, 4, 2")
    k(f"v_sub_u32 {v(VA)}, v3, v2")
    k(f"v_lshlrev_b32 {v(VA)}, 4, {v(VA)}")
    k("s_lshl_b32 s25, s24, 6")
    k(f"s_sub_u32 s26, {KOFF + 48 + 192}, s25")
    k(f"v_add_u32 {v(VA)}, s26, {v(VA)}")
    k(f"v_and_b32 {v(TMP)}, 7, v2")
    k(f"v_mul_u32_u24 {v(VB)}, {UST}, {v(TMP)}")
    k(f"v_lshrrev_b32 {v(TMP + 1)}, 3, v2")
    k(f"v_lshl_add_u32 {v(VB)}, {v(TMP + 1)}, 8, {v(VB)}")
    k(f"v_lshl_add_u32 {v(VB)}, v3, 4, {v(VB)}")
    k(f"s_sub_u32 s26, {UOFF + 320 - 512 + 192}, s25")
    k(f"v_add_u32 {v(VB)}, s26, {v(VB)}")
    VA2, VB2 = 14, 15
    k(f"v_subrev_u32 {v(VA2)}, 256, {v(VA)}")
    k(f"v_subrev_u32 {v(VB2)}, 256, {v(VB)}")
    ACC = 32
    AR = 64
    BR = 136
    for r in range(32):
        k(f"v_mov_b32 {v(ACC + r)}, 0")
    k("s_waitcnt vmcnt(0) lgkmcnt(0)")
    k("s_barrier")
    lg = Cnt(k, "lgkmcnt", 15)

    def areg(slot, part):
        return AR + (slot * 2 + part) * 4

    def loadA(ps, kk, slot):
        for part in range(2):
            lg.issue(("A", ps, kk, part))
            k(f"ds_read_b128 {v(areg(slot, part), 4)}, {v(VA if ps == 0 else VA2)} offset:{512 * (8 - kk) + KR_PART * part}")

    def loadB(ps, m):
        slot = m if m >= 0 else 8
        lg.issue(("B", ps, m))
        k(f"ds_read_b128 {v(BR + 4 * slot, 4)}, {v(VB if ps == 0 else VB2)} offset:{512 * (m + 1)}")

    def mm(ps, t, kk, slot, m):
        bslot = m if m >= 0 else 8
        lg.wait(("B", ps, m))
        for part in range(2):
            lg.wait(("A", ps, kk, part))
            k(f"v_mfma_f32_16x16x32_bf16 {v(ACC + 4 * t, 4)}, {v(areg(slot, part), 4)}, {v(BR + 4 * bslot, 4)}, {v(ACC + 4 * t, 4)}")

    loadB(0, 0)
    for kk in range(7):
        loadA(0, kk, kk)
    for m in range(8):
        for kk in range(8 - m):
            mm(0, m + kk, kk, kk, m)
            if m == 0 and kk == 0:
                loadA(0, 7, 7)
            if m == 0 and 1 <= kk <= 7:
                loadB(0, kk)
        if m == 0:
            lg.drain()
            k("s_cmp_lg_u32 s24, 0")
            k(f"s_cbranch_scc1 {name}_noext")
            loadA(0, 8, 8)
            loadB(0, -1)
            for t in range(8):
                mm(0, t, t + 1, t + 1, -1)
            lg.drain()
            k.label(f"{name}_noext")
        loadB(1, m)
        loadA(1, m, 7 - m)
    for m in range(8):
        for kk in range(8 - m):
            mm(1, m + kk, kk, 7 - kk, m)
    lg.drain()
    k("s_barrier")
    ET = 16
    k(f"v_and_b32 {v(ET)}, 7, v2")
    k(f"v_lshrrev_b32 {v(ET + 1)}, 3, v2")
    k(f"v_lshlrev_b32 {v(ET + 2)}, 2, {v(ET)}")
    k(f"v_lshl_add_u32 {v(ET + 2)}, {v(ET + 1)}, 9, {v(ET + 2)}")
    k(f"v_lshl_add_u32 {v(ET + 2)}, v3, 7, {v(ET + 2)}")
    k("s_lshl_b32 s25, s24, 13")
    k(f"v_add_u32 {v(ET + 2)}, s25, {v(ET + 2)}")
    k(f"v_and_b32 {v(ET + 3)}, 1, v3")
    k(f"v_lshl_or_b32 {v(ET + 3)}, {v(ET + 1)}, 1, {v(ET + 3)}")
    for kk in range(4):
        k(f"v_xor_b32 {v(ET + 4 + kk)}, {kk}, {v(ET + 3)}")
        k(f"v_lshl_add_u32 {v(ET + 4 + kk)}, {v(ET + 4 + kk)}, 5, {v(ET + 2)}")
    for t in range(8):
        for kk in range(4):
            k(f"ds_write_b32 {v(ET + 4 + kk)}, {v(ACC + 4 * t + kk)} offset:{UOFF + 1024 * t}")
        if t % 3 == 2:
            k("s_waitcnt lgkmcnt(0)")
    k("s_waitcnt lgkmcnt(0)")
    k("s_barrier")
    k("v_bfe_u32 v2, v0, 2, 1")
    k("v_bfe_u32 v3, v0, 4, 1")
    k("v_lshl_or_b32 v2, v3, 1, v2")
    k("v_xor_b32 v2, v2, v0")
    k("v_lshlrev_b32 v2, 5, v2")
    R = 64
    for w in range(4):
        k(f"ds_read_b128 {v(R + 8 * w, 4)}, v2 offset:{UOFF + 8192 * w}")
        k(f"ds_read_b128 {v(R + 8 * w + 4, 4)}, v2 offset:{UOFF + 8192 * w + 16}")
    k("s_and_b32 s25, s2, 1")
    k("s_lshl_b32 s25, s25, 4")
    k("s_lshr_b32 s29, s29, s25")
    k("s_lshl_b32 s29, s29, 16")
    HD = 16
    for j in range(8):
        unpack(k, HD + j, H + j // 2, j & 1)
        k(f"v_mul_f32 {v(HD + j)}, s29, {v(HD + j)}")
    round_pairs(k, [HD + j for j in range(8)], TMP)
    for j in range(8):
        unpack(k, XF + j, X + j // 2, j & 1)
    k("s_waitcnt lgkmcnt(0)")
    for j in range(8):
        k(f"v_add_f32 {v(R + j)}, {v(R + j)}, {v(R + 8 + j)}")
        k(f"v_add_f32 {v(R + 16 + j)}, {v(R + 16 + j)}, {v(R + 24 + j)}")
        k(f"v_add_f32 {v(R + j)}, {v(R + j)}, {v(R + 16 + j)}")
    round_pairs(k, [R + j for j in range(8)], TMP)
    for j in range(8):
        k(f"v_add_f32 {v(R + j)}, {v(R + j)}, {v(HD + j)}")
    round_pairs(k, [R + j for j in range(8)], TMP)
    for j in range(8):
        k(f"v_add_f32 {v(R + j)}, {v(R + j)}, {v(XF + j)}")
    for j in range(4):
        k(f"v_cvt_pk_bf16_f32 {v(TMP + j)}, {v(R + 2 * j)}, {v(R + 2 * j + 1)}")
    k(f"buffer_store_dwordx4 {v(TMP, 4)}, v1, s[20:23], 0 offen")
    k.label(done)
    k("s_endpgm")
    return k


def extend(kernels, launches):
    kernels.append(gen_conv("conv1_kernel", WS_X0T, WS_ST0, WS_X1T))
    launches.append(("conv1_kernel", D, 256, CONV_LDS))
    try:
        import gen3
        gen3.extend(kernels, launches)
    except ImportError:
        pass
```

```python
from asmlib import Kernel, a, s, v
from gen import *
from gen2 import Cnt, unpack, round_pairs, ln_stats, gen_conv, CONV_LDS

OOB = 0x40000000
G1_STAT = 131072
G1_LDS = G1_STAT + 1024
GLT = GKS * 1024


def gen_gemm1(name, ws_xin):
    k = Kernel(name)
    done = f"{name}_done"
    k("s_load_dwordx2 s[4:5], s[0:1], 120")
    k("s_cmp_ge_u32 s2, 256")
    k(f"s_cbranch_scc1 {done}")
    k("v_readfirstlane_b32 s24, v0")
    k("s_lshr_b32 s24, s24, 6")
    k("s_and_b32 s25, s2, 7")
    k("s_lshr_b32 s26, s2, 3")
    k("s_lshr_b32 s27, s25, 1")
    k("s_lshl_b32 s27, s27, 2")
    k("s_and_b32 s28, s26, 3")
    k("s_add_u32 s27, s27, s28")
    k("s_and_b32 s28, s25, 1")
    k("s_lshl_b32 s28, s28, 3")
    k("s_lshr_b32 s29, s26, 2")
    k("s_add_u32 s28, s28, s29")
    k("s_mul_i32 s29, s28, 11")
    k("s_mul_i32 s30, s24, 3")
    k("s_add_u32 s29, s29, s30")
    SA, SG, SC = 32, 36, 40
    for mt in range(3):
        k(f"s_add_u32 s30, s29, {mt}")
        k(f"s_lshl_b32 {s(SA + mt)}, s30, 14")
        k(f"s_lshl_b32 {s(SC + mt)}, s30, 6")
        k("s_lshr_b32 s31, s30, 2")
        k("s_lshl_b32 s31, s31, 10")
        k("s_and_b32 s30, s30, 3")
        k("s_lshl_b32 s30, s30, 8")
        k("s_add_u32 s31, s31, s30")
        k(f"s_mul_i32 s30, s27, {8 * GLT}")
        k(f"s_add_u32 {s(SG + mt)}, s31, s30")
    k("s_cmp_eq_u32 s24, 3")
    k(f"s_cselect_b32 {s(SA + 2)}, 0x{OOB:x}, {s(SA + 2)}")
    k(f"s_cselect_b32 {s(SG + 2)}, 0x{OOB:x}, {s(SG + 2)}")
    k(f"s_cselect_b32 {s(SC + 2)}, 0x{OOB:x}, {s(SC + 2)}")
    VAD, STT, CSR, ACC, AR, BR, ET = 8, 16, 20, 32, 128, 176, 208
    k("v_and_b32 v3, 63, v0")
    k("v_lshlrev_b32 v1, 4, v3")
    k("v_lshrrev_b32 v4, 4, v3")
    k("v_and_b32 v5, 15, v3")
    k("s_and_b32 s30, s24, 1")
    k("s_lshl_b32 s30, s30, 3")
    k("v_lshlrev_b32 v6, 1, v4")
    k("v_or_b32 v6, s30, v6")
    k("v_xor_b32 v6, v6, v5")
    k("v_lshlrev_b32 v6, 4, v6")
    k("v_lshl_add_u32 v2, v4, 12, v6")
    k("s_lshl_b32 s30, s24, 15")
    k("s_lshl_b32 s31, s27, 8")
    k("s_add_u32 s30, s30, s31")
    k("v_add_u32 v2, s30, v2")
    k("s_waitcnt lgkmcnt(0)")
    k.srd(8, 4, ws_xin, XT_BYTES)
    k.srd(12, 4, WS_W1, W1_BYTES)
    k.srd(16, 4, WS_CS, 2 * CS_HALF)
    k.srd(20, 4, WS_G, G_BYTES)
    vm = Cnt(k, "vmcnt", 60)
    lg = Cnt(k, "lgkmcnt", 15)
    k("s_lshl_b32 s44, s24, 11")
    SX = 45

    def issueX(ks):
        k(f"s_add_u32 m0, s44, {ks * 8192}")
        k(f"s_mov_b32 {s(SX)}, {ks * 131072}")
        k(f"s_mov_b32 {s(SX + 1)}, {ks * 131072 + 16384 - 1024}")
        vm.issue(("X", ks))
        k(f"buffer_load_dwordx4 v2, s[8:11], {s(SX)} offen lds")
        vm.issue(("X", ks))
        k(f"buffer_load_dwordx4 v2, s[8:11], {s(SX + 1)} offen offset:1024 lds")

    def issueW(ks):
        if ks and ks % 4 == 0:
            for mt in range(3):
                k(f"s_add_u32 {s(SA + mt)}, {s(SA + mt)}, 4096")
        for mt in range(3):
            vm.issue(("W", ks))
            k(f"buffer_load_dwordx4 {v(AR + (ks % 4) * 12 + 4 * mt, 4)}, v1, s[12:15], {s(SA + mt)} offen offset:{(ks % 4) * 1024}")

    issueX(0)
    issueW(0)
    k("v_lshlrev_b32 v6, 4, v4")
    k(f"v_add_u32 v7, {CS_HALF}, v6")
    for mt in range(3):
        vm.issue(("CS",))
        k(f"buffer_load_dwordx4 {v(CSR + 4 * mt, 4)}, v6, s[16:19], {s(SC + mt)} offen")
        vm.issue(("CS",))
        k(f"buffer_load_dwordx4 {v(ET + 4 * mt, 4)}, v7, s[16:19], {s(SC + mt)} offen")
    issueX(1)
    issueW(1)
    issueX(2)
    issueW(2)
    issueX(3)
    issueX(4)
    k("v_lshrrev_b32 v6, 2, v5")
    k("v_and_b32 v7, 1, v4")
    k("v_lshlrev_b32 v7, 3, v7")
    k("v_lshl_or_b32 v7, v6, 1, v7")
    k("v_lshlrev_b32 v7, 4, v7")
    k("v_lshl_add_u32 v6, v4, 3, v6")
    k("v_lshlrev_b32 v6, 8, v6")
    k(f"v_and_b32 {v(ET + 12)}, 3, v3")
    k(f"v_lshl_add_u32 v6, {v(ET + 12)}, 3, v6")
    for jl in range(8):
        k(f"s_lshl_b32 s30, s24, 1")
        k(f"s_add_u32 s30, s30, {jl}")
        k("s_and_b32 s30, s30, 7")
        k("s_lshl_b32 s30, s30, 5")
        k(f"v_xor_b32 {v(VAD + jl)}, s30, v7")
        k(f"v_add_u32 {v(VAD + jl)}, {v(VAD + jl)}, v6")
    for r in range(96):
        k(f"v_mov_b32 {v(ACC + r)}, 0")
    for r in range(4):
        k(f"v_mov_b32 {v(STT + r)}, 0")
    k(f"s_mov_b32 s47, 0x{ONES_BF16:08x}")

    def readB(ks, jl):
        off = (ks % 8) * 8192
        for half in range(2):
            lg.issue(("B", ks, jl))
            k(f"ds_read_b64_tr_b16 {v(BR + 4 * jl + 2 * half, 2)}, {v(VAD + jl)} offset:{off + half * 1024}")

    vm.wait(("X", 0))
    k("s_barrier")
    for jl in range(8):
        readB(0, jl)
    vm.wait(("CS",))
    for r in range(12):
        k(f"v_add_f32 {v(CSR + r)}, {v(CSR + r)}, {v(ET + r)}")
    for ks in range(16):
        if ks + 1 < 16:
            vm.wait(("X", ks + 1))
        vm.wait(("W", ks))
        if ks + 1 < 16:
            k("s_barrier")
        for jl in range(8):
            lg.wait(("B", ks, jl))
            for mt in range(3):
                acc = ACC + (mt * 8 + jl) * 4
                k(f"v_mfma_f32_16x16x32_bf16 {v(acc, 4)}, {v(AR + (ks % 4) * 12 + 4 * mt, 4)}, {v(BR + 4 * jl, 4)}, {v(acc, 4)}")
            if jl < 2:
                for q in range(4):
                    b = v(BR + 4 * jl + q)
                    k(f"v_dot2_f32_bf16 {v(STT + 2 * jl)}, {b}, s47, {v(STT + 2 * jl)}")
                    k(f"v_dot2_f32_bf16 {v(STT + 2 * jl + 1)}, {b}, {b}, {v(STT + 2 * jl + 1)}")
            if ks + 1 < 16:
                if ks + 1 == 8:
                    k(f"v_add_u32 {v(VAD + jl)}, 0x10000, {v(VAD + jl)}")
                readB(ks + 1, jl)
            if jl == 2 and ks + 3 < 16:
                issueW(ks + 3)
            if jl == 4 and ks + 5 < 16:
                issueX(ks + 5)
    for r in range(4):
        row4_sum(k, STT + r, ET)
    MB, RI = ET + 2, ET + 4
    ln_stats(k, STT, 2, MB, RI, ET)
    for j in range(2):
        k(f"v_mov_b32 {v(ET + 8 + 2 * j)}, {v(RI + j)}")
        k(f"v_mul_f32 {v(ET + 9 + 2 * j)}, {v(MB + j)}, {v(RI + j)}")
    k("s_lshl_b32 s30, s24, 8")
    k("v_lshlrev_b32 v6, 3, v5")
    k("v_add_u32 v7, s30, v6")
    k("v_cmp_gt_u32 vcc, 16, v3")
    k("s_and_saveexec_b64 s[30:31], vcc")
    k(f"v_add_u32 v7, {G1_STAT}, v7")
    k(f"ds_write_b64 v7, {v(ET + 8, 2)}")
    k(f"ds_write_b64 v7, {v(ET + 10, 2)} offset:128")
    k("s_mov_b64 exec, s[30:31]")
    k("s_waitcnt lgkmcnt(0)")
    k("s_barrier")
    RM = BR
    k(f"v_add_u32 v6, {G1_STAT}, v6")
    k("v_lshlrev_b32 v7, 4, v5")
    k("v_lshl_add_u32 v7, v4, 2, v7")
    for jl in range(8):
        k(f"s_lshl_b32 s30, s24, 1")
        k(f"s_add_u32 s30, s30, {jl}")
        k("s_and_b32 s30, s30, 7")
        k("s_lshl_b32 s31, s30, 7")
        k(f"v_add_u32 {v(ET)}, s31, v6")
        k(f"ds_read_b64 {v(RM + 2 * jl, 2)}, {v(ET)}")
        k(f"s_mul_i32 s31, s30, {GLT}")
        k(f"v_add_u32 {v(VAD + jl)}, s31, v7")
    k("s_waitcnt lgkmcnt(0)")
    cnt = 0
    for mt in range(3):
        for jl in range(8):
            acc = ACC + (mt * 8 + jl) * 4
            T = ET + 8 * (cnt % 4)
            cnt += 1
            rinv, mr = RM + 2 * jl, RM + 2 * jl + 1
            for q in range(4):
                k(f"v_mul_f32 {v(T + q)}, {v(CSR + 4 * mt + q)}, {v(mr)}")
            for q in range(4):
                k(f"v_fma_f32 {v(T + q)}, {v(acc + q)}, {v(rinv)}, -{v(T + q)}")
            for q in range(2):
                k(f"v_mul_f32 {v(T + 4 + q)}, {hx(-LOG2E)}, {v(T + q)}")
            for q in range(2):
                k(f"v_exp_f32 {v(T + 4 + q)}, {v(T + 4 + q)}")
            for q in range(2):
                k(f"v_mul_f32 {v(T + q)}, {v(T + q)}, {v(T + 2 + q)}")
            for q in range(2):
                k(f"v_add_f32 {v(T + 4 + q)}, 1.0, {v(T + 4 + q)}")
            for q in range(2):
                k(f"v_rcp_f32 {v(T + 4 + q)}, {v(T + 4 + q)}")
            for q in range(2):
                k(f"v_mul_f32 {v(T + q)}, {v(T + q)}, {v(T + 4 + q)}")
            k(f"v_cvt_pk_bf16_f32 {v(T + 6)}, {v(T)}, {v(T + 1)}")
            k(f"buffer_store_dword {v(T + 6)}, {v(VAD + jl)}, s[20:23], {s(SG + mt)} offen")
    k.label(done)
    k("s_endpgm")
    return k


RS2 = 272
G2_RED = 64 * RS2
G2_LDS = 4 * G2_RED


def gen_gemm2(name, ws_xin, ws_xout, ws_st):
    final = ws_xout is None
    k = Kernel(name)
    done = f"{name}_done"
    k("s_load_dwordx2 s[4:5], s[0:1], 120")
    k("s_load_dwordx2 s[6:7], s[0:1], 104")
    k("s_cmp_ge_u32 s2, 256")
    k(f"s_cbranch_scc1 {done}")
    k("v_readfirstlane_b32 s28, v0")
    k("s_lshr_b32 s28, s28, 6")
    k("s_and_b32 s29, s2, 7")
    k("s_lshr_b32 s30, s2, 3")
    k("s_lshl_b32 s29, s29, 2")
    k("s_and_b32 s31, s30, 3")
    k("s_add_u32 s29, s29, s31")
    k("s_lshr_b32 s30, s30, 2")
    SG, SW = 32, 36
    for i in range(4):
        k(f"s_lshl_b32 s31, s29, 2")
        k(f"s_add_u32 s31, s31, {i}")
        k(f"s_mul_i32 {s(SG + i)}, s31, {GLT}")
        k(f"s_lshl_b32 s31, s30, 2")
        k(f"s_add_u32 s31, s31, {i}")
        k(f"s_mul_i32 {s(SW + i)}, s31, {NKS2 * 1024}")
    k("v_and_b32 v3, 63, v0")
    k("v_lshlrev_b32 v1, 4, v3")
    k("s_lshl_b32 s31, s28, 10")
    k("v_add_u32 v1, s31, v1")
    k("v_and_b32 v4, 7, v0")
    k("v_lshrrev_b32 v5, 3, v0")
    k("v_lshlrev_b32 v2, 12, v5")
    k("v_lshl_add_u32 v2, v4, 4, v2")
    k("s_lshl_b32 s31, s30, 18")
    k("s_lshl_b32 s40, s29, 7")
    k("s_add_u32 s31, s31, s40")
    k("v_add_u32 v2, s31, v2")
    k("s_mov_b32 s41, 0x20000")
    k("s_waitcnt lgkmcnt(0)")
    k.srd(8, 4, WS_G, G_BYTES)
    k.srd(12, 4, WS_W2, W2_BYTES)
    k.srd(16, 4, ws_xin, XT_BYTES)
    if final:
        k.srd(20, 6, 0, XT_BYTES)
    else:
        k.srd(20, 4, ws_xout, XT_BYTES)
        k.srd(24, 4, ws_st, ST_BYTES)
    ACC, ST0, XR, ET = 32, 96, 8, 16
    NSTG = 3
    vm = Cnt(k, "vmcnt", 60)

    def issue(it):
        base = ST0 + (it % NSTG) * 32
        if it:
            k("v_add_u32 v1, 0x1000, v1")
        for i in range(4):
            vm.issue(("S", it))
            k(f"buffer_load_dwordx4 {v(base + 4 * i, 4)}, v1, s[8:11], {s(SG + i)} offen")
            vm.issue(("S", it))
            k(f"buffer_load_dwordx4 {v(base + 16 + 4 * i, 4)}, v1, s[12:15], {s(SW + i)} offen")

    NIT = 11
    for it in range(NSTG):
        issue(it)
    vm.issue(("XR",))
    k(f"buffer_load_dwordx4 {v(XR, 4)}, v2, s[16:19], 0 offen")
    vm.issue(("XR",))
    k(f"buffer_load_dwordx4 {v(XR + 4, 4)}, v2, s[16:19], s41 offen")
    for r in range(64):
        k(f"v_mov_b32 {v(ACC + r)}, 0")
    for it in range(NIT):
        base = ST0 + (it % NSTG) * 32
        vm.wait(("S", it))
        for aa in range(4):
            for b in range(4):
                acc = ACC + (aa * 4 + b) * 4
                k(f"v_mfma_f32_16x16x32_bf16 {v(acc, 4)}, {v(base + 4 * aa, 4)}, {v(base + 16 + 4 * b, 4)}, {v(acc, 4)}")
        if it + NSTG < NIT:
            issue(it + NSTG)
    k("v_and_b32 v6, 15, v3")
    k("v_lshrrev_b32 v7, 4, v3")
    k(f"v_mul_u32_u24 v6, {RS2}, v6")
    k("v_lshl_add_u32 v6, v7, 4, v6")
    k(f"s_mul_i32 s31, s28, {G2_RED}")
    k("v_add_u32 v6, s31, v6")
    n = 0
    for aa in range(4):
        for b in range(4):
            acc = ACC + (aa * 4 + b) * 4
            k(f"ds_write_b128 v6, {v(acc, 4)} offset:{b * 16 * RS2 + aa * 64}")
            n += 1
            if n % 8 == 0:
                k("s_waitcnt lgkmcnt(0)")
    k("s_barrier")
    k(f"v_mul_u32_u24 v6, {RS2}, v5")
    k("v_lshl_add_u32 v6, v4, 5, v6")
    R = 96
    for dd in range(2):
        for w in range(4):
            for hf in range(2):
                k(f"ds_read_b128 {v(R + dd * 32 + w * 8 + 4 * hf, 4)}, v6 offset:{w * G2_RED + dd * 32 * RS2 + 16 * hf}")
        k("s_waitcnt lgkmcnt(0)")
    vm.drain()
    O = 32
    PK = 48
    XF = 56
    for dd in range(2):
        for j in range(8):
            r0 = R + dd * 32 + j
            k(f"v_add_f32 {v(r0)}, {v(r0)}, {v(r0 + 8)}")
            k(f"v_add_f32 {v(r0 + 16)}, {v(r0 + 16)}, {v(r0 + 24)}")
            k(f"v_add_f32 {v(O + dd * 8 + j)}, {v(r0)}, {v(r0 + 16)}")
        round_pairs(k, [O + dd * 8 + j for j in range(8)], ET)
        for j in range(8):
            unpack(k, XF + j, XR + dd * 4 + j // 2, j & 1)
            k(f"v_add_f32 {v(O + dd * 8 + j)}, {v(O + dd * 8 + j)}, {v(XF + j)}")
        for j in range(4):
            k(f"v_cvt_pk_bf16_f32 {v(PK + dd * 4 + j)}, {v(O + dd * 8 + 2 * j)}, {v(O + dd * 8 + 2 * j + 1)}")
    if not final:
        k(f"buffer_store_dwordx4 {v(PK, 4)}, v2, s[20:23], 0 offen")
        k(f"buffer_store_dwordx4 {v(PK + 4, 4)}, v2, s[20:23], s41 offen")
        SV, QV = 64, 72
        for dd in range(2):
            for j in range(8):
                unpack(k, O + dd * 8 + j, PK + dd * 4 + j // 2, j & 1)
        for j in range(8):
            k(f"v_add_f32 {v(SV + j)}, {v(O + j)}, {v(O + 8 + j)}")
            k(f"v_mul_f32 {v(QV + j)}, {v(O + j)}, {v(O + j)}")
            k(f"v_fmac_f32 {v(QV + j)}, {v(O + 8 + j)}, {v(O + 8 + j)}")
        for base in (SV, QV):
            for j in range(4):
                k(f"v_permlane32_swap_b32 {v(base + j)}, {v(base + j + 4)}")
            for j in range(4):
                k(f"v_add_f32 {v(base + j)}, {v(base + j)}, {v(base + j + 4)}")
        for base in (SV, QV):
            for j in range(2):
                k(f"v_permlane16_swap_b32 {v(base + j)}, {v(base + j + 2)}")
            for j in range(2):
                k(f"v_add_f32 {v(base + j)}, {v(base + j)}, {v(base + j + 2)}")
        for base in (SV, QV):
            for j in range(2):
                k(f"v_add_f32_dpp {v(base + 4 + j)}, {v(base + j)}, {v(base + j)} row_ror:8 row_mask:0xf bank_mask:0xf")
        k("v_and_b32 v6, 8, v3")
        k("v_cmp_eq_u32 vcc, 0, v6")
        k(f"v_cndmask_b32 {v(SV)}, {v(SV + 5)}, {v(SV + 4)}, vcc")
        k(f"v_cndmask_b32 {v(QV)}, {v(QV + 5)}, {v(QV + 4)}, vcc")
        k("v_lshrrev_b32 v6, 3, v3")
        k("v_lshl_add_u32 v6, v4, 3, v6")
        k("v_lshlrev_b32 v6, 3, v6")
        k("s_lshl_b32 s31, s29, 9")
        k(f"buffer_atomic_add_f32 {v(SV)}, v6, s[24:27], s31 offen")
        k(f"buffer_atomic_add_f32 {v(QV)}, v6, s[24:27], s31 offen offset:4")
    else:
        RT = 144
        k("s_barrier")
        k(f"v_mul_u32_u24 v6, {8 * RT}, v4")
        k("v_lshl_add_u32 v6, v5, 1, v6")
        for dd in range(2):
            for j in range(8):
                op = "ds_write_b16_d16_hi" if j & 1 else "ds_write_b16"
                k(f"{op} v6, {v(PK + dd * 4 + j // 2)} offset:{j * RT + dd * 64}")
            k("s_waitcnt lgkmcnt(0)")
        k("s_barrier")
        k(f"v_mul_u32_u24 v6, {RT}, v5")
        k("v_lshl_add_u32 v6, v4, 4, v6")
        k(f"ds_read_b128 {v(O, 4)}, v6")
        k(f"ds_read_b128 {v(O + 4, 4)}, v6 offset:{32 * RT}")
        k("v_lshlrev_b32 v7, 10, v5")
        k("v_lshl_add_u32 v7, v4, 4, v7")
        k("s_lshl_b32 s31, s29, 16")
        k("s_lshl_b32 s40, s30, 7")
        k("s_add_u32 s31, s31, s40")
        k("s_add_u32 s40, s31, 0x8000")
        k("s_waitcnt lgkmcnt(0)")
        k(f"buffer_store_dwordx4 {v(O, 4)}, v7, s[20:23], s31 offen")
        k(f"buffer_store_dwordx4 {v(O + 4, 4)}, v7, s[20:23], s40 offen")
    k.label(done)
    k("s_endpgm")
    return k


def extend(kernels, launches):
    kernels.append(gen_gemm1("gemm1a_kernel", WS_X1T))
    launches.append(("gemm1a_kernel", 256, 256, G1_LDS))
    kernels.append(gen_gemm2("gemm2a_kernel", WS_X1T, WS_X2T, WS_ST2))
    launches.append(("gemm2a_kernel", 256, 256, G2_LDS))
    kernels.append(gen_conv("conv2_kernel", WS_X2T, WS_ST2, WS_X3T))
    launches.append(("conv2_kernel", D, 256, CONV_LDS))
    kernels.append(gen_gemm1("gemm1b_kernel", WS_X3T))
    launches.append(("gemm1b_kernel", 256, 256, G1_LDS))
    kernels.append(gen_gemm2("gemm2b_kernel", WS_X3T, None, None))
    launches.append(("gemm2b_kernel", 256, 256, G2_LDS))
```

```python
import struct
import sys

from asmlib import Kernel, a, s, v

L, D, NST, F = 2048, 512, 128, 1376

KR_PART = 4608
KR_CH = 2 * KR_PART
P0 = 2072
WS_KR = 0x0000000
WS_X0T = 0x0500000
WS_X1T = 0x0700000
WS_X2T = 0x0900000
WS_X3T = 0x0B00000
XT_BYTES = D * L * 2
WS_ST0 = 0x0D00000
WS_ST2 = 0x0D10000
ST_BYTES = L * 8
WS_CS = 0x0D20000
NPT = 176
CS_HALF = NPT * 16 * 4
WS_W1 = 0x0E00000
W1_BYTES = NPT * 16 * 1024
WS_W2 = 0x1100000
NKS2 = 43
W2_BYTES = 32 * NKS2 * 1024
WS_G = 0x1300000
GKS = 44
G_BYTES = 128 * GKS * 1024


def f32bits(x):
    return struct.unpack("<I", struct.pack("<f", x))[0]


def hx(x):
    return f"0x{f32bits(x):08x}"


LOG2E = 1.4426950408889634
LOG2E_HI = struct.unpack("<f", struct.pack("<f", LOG2E))[0]
LOG2E_LO = LOG2E - LOG2E_HI
LN2 = 0.6931471805599453
INV2PI = 0.15915494309189535
ONES_BF16 = 0x3F803F80


N_KGEN, N_X0, N_W1, N_W2 = 512, 64, 88, 43
PREP_GRID = N_KGEN + N_X0 + N_W1 + N_W2
PREP_LDS = 36864


def row4_sum(k, x, t):
    k(f"v_mov_b32 {v(t)}, {v(x)}")
    k(f"v_permlane16_swap_b32 {v(x)}, {v(t)}")
    k(f"v_add_f32 {v(x)}, {v(x)}, {v(t)}")
    k(f"v_mov_b32 {v(t)}, {v(x)}")
    k(f"v_permlane32_swap_b32 {v(x)}, {v(t)}")
    k(f"v_add_f32 {v(x)}, {v(x)}, {v(t)}")


def gen_prep():
    k = Kernel("prep_kernel")
    k("s_load_dwordx16 s[16:31], s[0:1], 0")
    k("s_load_dwordx8 s[32:39], s[0:1], 80")
    k("s_load_dwordx2 s[40:41], s[0:1], 120")
    k(f"s_cmp_ge_u32 s2, {PREP_GRID}")
    k("s_cbranch_scc1 prep_done")
    k(f"s_cmp_ge_u32 s2, {N_KGEN}")
    k("s_cbranch_scc1 prep_not_kgen")

    PRM = 8
    ACC = 32
    TA = 44
    TB = 47
    DT = 48
    T = 50
    k("s_lshl_b32 s3, s2, 8")
    k("v_and_b32 v1, 0xf0, v0")
    k("v_add_u32 v1, s3, v1")
    k("s_lshr_b32 s4, s2, 1")
    k("s_lshl_b32 s4, s4, 2")
    k("s_waitcnt lgkmcnt(0)")
    k("s_load_dword s5, s[30:31], s4")
    for i in range(6):
        k(f"global_load_dwordx4 {v(PRM + 4 * i, 4)}, v1, {s(18 + 2 * i, 2)}")
    k.srd(8, 40, WS_KR, 512 * KR_CH)
    k("v_and_b32 v2, 15, v0")
    k("v_lshrrev_b32 v3, 3, v2")
    k("v_and_b32 v4, 7, v2")
    k(f"v_lshl_add_u32 {v(TA)}, v3, 7, v4")
    k("v_lshrrev_b32 v5, 2, v2")
    k("v_and_b32 v6, 3, v2")
    k("v_lshlrev_b32 v6, 1, v6")
    k("v_lshl_add_u32 v5, v5, 7, v6")
    k("v_add_u32 v5, 256, v5")
    k("v_lshrrev_b32 v6, 1, v4")
    k("v_and_b32 v7, 1, v2")
    k("v_lshlrev_b32 v7, 2, v7")
    k("v_lshl_add_u32 v6, v6, 7, v7")
    k("v_add_u32 v6, 512, v6")
    k("v_cmp_gt_u32 vcc, 8, v2")
    k(f"v_cndmask_b32 {v(TA + 1)}, v6, v5, vcc")
    k("v_min_u32 v5, 8, v2")
    k("v_lshlrev_b32 v5, 7, v5")
    k(f"v_add_u32 {v(TA + 2)}, 0x400, v5")
    k(f"v_lshlrev_b32 {v(TB)}, 3, v2")
    for r in (TA, TA + 1, TA + 2, TB):
        k(f"v_cvt_f32_u32 {v(r)}, {v(r)}")
    for r in range(12):
        k(f"v_mov_b32 {v(ACC + r)}, 0")
    k("s_waitcnt lgkmcnt(0)")
    k("s_and_b32 s6, s2, 1")
    k("s_lshl_b32 s6, s6, 4")
    k("s_lshr_b32 s5, s5, s6")
    k("s_lshl_b32 s5, s5, 16")
    k(f"v_mov_b32 {v(T)}, s5")
    k(f"v_mul_f32 {v(T + 1)}, {hx(LOG2E_HI)}, {v(T)}")
    k(f"v_mov_b32 {v(T + 2)}, {hx(LOG2E_HI)}")
    k(f"v_fma_f32 {v(T + 2)}, {v(T)}, {v(T + 2)}, -{v(T + 1)}")
    k(f"v_fmac_f32 {v(T + 2)}, {hx(LOG2E_LO)}, {v(T)}")
    k(f"v_exp_f32 {v(T + 3)}, {v(T + 1)}")
    k(f"v_mul_f32 {v(T + 2)}, {hx(LN2)}, {v(T + 2)}")
    k(f"v_fma_f32 {v(T + 3)}, {v(T + 3)}, {v(T + 2)}, {v(T + 3)}")
    k(f"v_cvt_pk_bf16_f32 {v(T + 3)}, {v(T + 3)}, {v(T + 3)}")
    k(f"v_lshlrev_b32 {v(DT)}, 16, {v(T + 3)}")
    k("s_waitcnt vmcnt(0)")
    U = T
    A2, B2, CR, CI = T + 6, T + 7, T + 8, T + 9
    W = T + 10
    for j in range(8):
        for i in range(6):
            src = v(PRM + 4 * i + (j >> 1))
            if j & 1:
                k(f"v_and_b32 {v(U + i)}, 0xffff0000, {src}")
            else:
                k(f"v_lshlrev_b32 {v(U + i)}, 16, {src}")
        k(f"v_mul_f32 {v(A2)}, {v(DT)}, {v(U + 0)}")
        k(f"v_mul_f32 {v(B2)}, {v(DT)}, {v(U + 1)}")
        k(f"v_mul_f32 {v(U + 2)}, {v(DT)}, {v(U + 2)}")
        k(f"v_mul_f32 {v(U + 3)}, {v(DT)}, {v(U + 3)}")
        k(f"v_mul_f32 {v(A2)}, {hx(LOG2E)}, {v(A2)}")
        k(f"v_mul_f32 {v(B2)}, {hx(INV2PI)}, {v(B2)}")
        k(f"v_mul_f32 {v(CR)}, {v(U + 4)}, {v(U + 2)}")
        k(f"v_mul_f32 {v(CI)}, {v(U + 4)}, {v(U + 3)}")
        k(f"v_fma_f32 {v(CR)}, -{v(U + 5)}, {v(U + 3)}, {v(CR)}")
        k(f"v_fmac_f32 {v(CI)}, {v(U + 5)}, {v(U + 2)}")
        tt = [TA, TA + 1, TA + 2, TB]
        for x in range(4):
            k(f"v_mul_f32 {v(W + 4 * x)}, {v(A2)}, {v(tt[x])}")
            k(f"v_mul_f32 {v(W + 4 * x + 1)}, {v(B2)}, {v(tt[x])}")
        for x in range(4):
            k(f"v_fract_f32 {v(W + 4 * x + 1)}, {v(W + 4 * x + 1)}")
        for x in range(4):
            k(f"v_exp_f32 {v(W + 4 * x)}, {v(W + 4 * x)}")
            k(f"v_cos_f32 {v(W + 4 * x + 2)}, {v(W + 4 * x + 1)}")
            k(f"v_sin_f32 {v(W + 4 * x + 3)}, {v(W + 4 * x + 1)}")
        for x in range(3):
            k(f"v_mul_f32 {v(W + 4 * x + 2)}, {v(W + 4 * x)}, {v(W + 4 * x + 2)}")
            k(f"v_mul_f32_e64 {v(W + 4 * x + 3)}, -{v(W + 4 * x)}, {v(W + 4 * x + 3)}")
        x = 3
        k(f"v_mul_f32 {v(W + 14)}, {v(W + 12)}, {v(W + 14)}")
        k(f"v_mul_f32 {v(W + 15)}, {v(W + 12)}, {v(W + 15)}")
        k(f"v_mul_f32 {v(W + 12)}, {v(CR)}, {v(W + 14)}")
        k(f"v_mul_f32 {v(W + 13)}, {v(CR)}, {v(W + 15)}")
        k(f"v_fma_f32 {v(W + 12)}, -{v(CI)}, {v(W + 15)}, {v(W + 12)}")
        k(f"v_fmac_f32 {v(W + 13)}, {v(CI)}, {v(W + 14)}")
        for x in range(3):
            k(f"v_mfma_f32_16x16x4_f32 {v(ACC + 4 * x, 4)}, {v(W + 4 * x + 2)}, {v(W + 12)}, {v(ACC + 4 * x, 4)}")
            k(f"v_mfma_f32_16x16x4_f32 {v(ACC + 4 * x, 4)}, {v(W + 4 * x + 3)}, {v(W + 13)}, {v(ACC + 4 * x, 4)}")
    k("v_lshrrev_b32 v3, 6, v0")
    k("v_bfe_u32 v4, v0, 4, 2")
    k("v_mul_u32_u24 v3, 3072, v3")
    k("v_lshl_add_u32 v3, v4, 8, v3")
    k("v_lshl_add_u32 v3, v2, 2, v3")
    for Tt in range(3):
        for kk in range(4):
            k(f"ds_write_b32 v3, {v(ACC + 4 * Tt + kk)} offset:{(16 * Tt + kk) * 64}")
    k("s_waitcnt lgkmcnt(0)")
    k("s_barrier")
    FT = 12288
    k("v_lshlrev_b32 v3, 2, v0")
    for e in range(3):
        for w in range(4):
            k(f"ds_read_b32 {v(T + 4 * e + w)}, v3 offset:{w * 3072 + e * 1024}")
    k("v_mov_b32 v4, 0")
    k(f"v_mov_b32 v5, {FT + 768 * 4}")
    k("ds_write_b32 v5, v4")
    k("s_waitcnt lgkmcnt(0)")
    for e in range(3):
        k(f"v_add_f32 {v(T + 4 * e)}, {v(T + 4 * e)}, {v(T + 4 * e + 1)}")
        k(f"v_add_f32 {v(T + 4 * e + 2)}, {v(T + 4 * e + 2)}, {v(T + 4 * e + 3)}")
        k(f"v_add_f32 {v(T + 4 * e)}, {v(T + 4 * e)}, {v(T + 4 * e + 2)}")
        k(f"ds_write_b32 v3, {v(T + 4 * e)} offset:{FT + e * 1024}")
    k("s_waitcnt lgkmcnt(0)")
    k("s_barrier")
    k("s_mul_i32 s4, s2, 9216")

    def expand(chunk_add):
        LG = 8
        TT = 16
        IX = 24
        X1, X2, X3 = 32, 33, 34
        k("v_lshlrev_b32 v3, 3, v0")
        for jj in range(8):
            k(f"v_sub_u32 {v(LG + jj)}, {P0 - 8 * chunk_add - jj}, v3")
            k(f"v_cvt_f32_u32 {v(TT + jj)}, {v(LG + jj)}")
        for jj in range(0, 8, 2):
            k(f"v_cvt_pk_bf16_f32 {v(X1)}, {v(TT + jj)}, {v(TT + jj + 1)}")
            k(f"v_lshlrev_b32 {v(TT + jj)}, 16, {v(X1)}")
            k(f"v_and_b32 {v(TT + jj + 1)}, 0xffff0000, {v(X1)}")
        for jj in range(8):
            t = v(TT + jj)
            k(f"v_cvt_u32_f32 {t}, {t}")
            k(f"v_or_b32 {v(X1)}, 1, {t}")
            k(f"v_ffbh_u32 {v(X1)}, {v(X1)}")
            k(f"v_sub_u32 {v(X1)}, 24, {v(X1)}")
            k(f"v_med3_i32 {v(X1)}, {v(X1)}, 0, 3")
            k(f"v_lshrrev_b32 {v(X2)}, 7, {t}")
            k(f"v_sub_u32 {v(X3)}, 3, {v(X1)}")
            k(f"v_lshlrev_b32 {v(X2)}, {v(X3)}, {v(X2)}")
            k(f"v_and_b32 {v(X3)}, 7, {t}")
            k(f"v_lshrrev_b32 {v(X3)}, {v(X1)}, {v(X3)}")
            k(f"v_lshl_add_u32 {v(X2)}, {v(X1)}, 3, {v(X2)}")
            k(f"v_add_u32 {v(X2)}, {v(X2)}, {v(X3)}")
            k(f"v_bfe_u32 {v(X3)}, {t}, 3, 4")
            k(f"v_lshl_add_u32 {v(X2)}, {v(X2)}, 4, {v(X3)}")
            k(f"v_cmp_gt_u32 vcc, 0x800, {v(LG + jj)}")
            k(f"v_mov_b32 {v(X3)}, 768")
            k(f"v_cndmask_b32 {v(X2)}, {v(X3)}, {v(X2)}, vcc")
            k(f"v_lshlrev_b32 {v(IX + jj)}, 2, {v(X2)}")
            k(f"ds_read_b32 {v(TT + jj)}, {v(IX + jj)} offset:{FT}")
        k("s_waitcnt lgkmcnt(0)")
        HI, LO = 36, 40
        for jj in range(0, 8, 2):
            h = v(HI + jj // 2)
            k(f"v_cvt_pk_bf16_f32 {h}, {v(TT + jj)}, {v(TT + jj + 1)}")
            k(f"v_lshlrev_b32 {v(X1)}, 16, {h}")
            k(f"v_and_b32 {v(X2)}, 0xffff0000, {h}")
            k(f"v_sub_f32 {v(X1)}, {v(TT + jj)}, {v(X1)}")
            k(f"v_sub_f32 {v(X2)}, {v(TT + jj + 1)}, {v(X2)}")
            k(f"v_cvt_pk_bf16_f32 {v(LO + jj // 2)}, {v(X1)}, {v(X2)}")
        k("v_lshlrev_b32 v3, 4, v0")
        k(f"v_add_u32 v4, {KR_PART}, v3")
        if chunk_add:
            k(f"v_add_u32 v3, {chunk_add * 16}, v3")
            k(f"v_add_u32 v4, {chunk_add * 16}, v4")
        k(f"buffer_store_dwordx4 {v(HI, 4)}, v3, s[8:11], s4 offen")
        k(f"buffer_store_dwordx4 {v(LO, 4)}, v4, s[8:11], s4 offen")

    expand(0)
    k("v_cmp_gt_u32 vcc, 32, v0")
    k("s_and_saveexec_b64 s[12:13], vcc")
    k("s_cbranch_execz prep_done")
    k.fence(4)
    expand(256)
    k("s_endpgm")

    k.label("prep_not_kgen")
    k.fence(2)
    k(f"s_cmp_ge_u32 s2, {N_KGEN + N_X0}")
    k("s_cbranch_scc1 prep_not_x0")

    RS = 1056

    def transpose32(is_x0):
        src = 16 if is_x0 else 36
        DAT = 8
        k("v_lshlrev_b32 v1, 4, v0")
        k("v_add_u32 v1, s4, v1")
        for j in range(8):
            if j:
                k(f"v_add_u32 v1, 0x1000, v1")
            k(f"global_load_dwordx4 {v(DAT + 4 * j, 4)}, v1, {s(src, 2)}")
        k("v_lshrrev_b32 v2, 6, v0")
        k("v_and_b32 v3, 63, v0")
        k(f"v_mul_u32_u24 v4, {RS}, v2")
        k("v_lshl_add_u32 v4, v3, 4, v4")
        if is_x0:
            SS = 40
            k(f"s_mov_b32 s7, 0x{ONES_BF16:08x}")
        for j in range(8):
            k(f"s_waitcnt vmcnt({7 - j})")
            k(f"ds_write_b128 v4, {v(DAT + 4 * j, 4)} offset:{4 * j * RS}")
            if is_x0:
                k(f"v_mov_b32 {v(SS + 2 * j)}, 0")
                k(f"v_mov_b32 {v(SS + 2 * j + 1)}, 0")
                for q in range(4):
                    k(f"v_dot2_f32_bf16 {v(SS + 2 * j)}, {v(DAT + 4 * j + q)}, s7, {v(SS + 2 * j)}")
                    k(f"v_dot2_f32_bf16 {v(SS + 2 * j + 1)}, {v(DAT + 4 * j + q)}, {v(DAT + 4 * j + q)}, {v(SS + 2 * j + 1)}")
        if is_x0:
            for mod in ("row_shr:1", "row_shr:2", "row_shr:4", "row_shr:8"):
                for r in range(16):
                    k(f"v_add_f32_dpp {v(SS + r)}, {v(SS + r)}, {v(SS + r)} {mod} row_mask:0xf bank_mask:0xf bound_ctrl:0")
            for r in range(16):
                k(f"v_add_f32_dpp {v(SS + r)}, {v(SS + r)}, {v(SS + r)} row_bcast:15 row_mask:0xa bank_mask:0xf")
            for r in range(16):
                k(f"v_add_f32_dpp {v(SS + r)}, {v(SS + r)}, {v(SS + r)} row_bcast:31 row_mask:0xc bank_mask:0xf")
            k("v_lshlrev_b32 v5, 3, v2")
            k("v_add_u32 v5, s5, v5")
            k("v_cmp_eq_u32 vcc, 63, v3")
            k("s_and_saveexec_b64 s[14:15], vcc")
            for j in range(8):
                k(f"buffer_store_dwordx2 {v(SS + 2 * j, 2)}, v5, s[44:47], 0 offen offset:{32 * j}")
            k("s_mov_b64 exec, s[14:15]")
            k("v_mov_b32 v56, 0")
            k("v_mov_b32 v57, 0")
            k("v_mov_b32 v58, 0")
            k("v_mov_b32 v59, 0")
            k("v_lshlrev_b32 v5, 4, v0")
            k("v_add_u32 v5, s5, v5")
            k("v_cmp_gt_u32 vcc, 16, v0")
            k("s_and_saveexec_b64 s[14:15], vcc")
            k("buffer_store_dwordx4 v[56:59], v5, s[48:51], 0 offen")
            k("s_mov_b64 exec, s[14:15]")
        k("s_waitcnt lgkmcnt(0)")
        k("s_barrier")
        k("v_and_b32 v5, 15, v0")
        k("v_bfe_u32 v6, v0, 4, 2")
        k("v_lshrrev_b32 v7, 2, v5")
        k("v_lshl_add_u32 v7, v6, 3, v7")
        k(f"v_mul_u32_u24 v7, {RS}, v7")
        k("v_and_b32 v4, 3, v0")
        k("v_lshl_add_u32 v7, v4, 3, v7")
        k("v_lshl_add_u32 v7, v2, 8, v7")
        for it in range(8):
            k(f"ds_read_b64_tr_b16 {v(DAT + 4 * it, 2)}, v7 offset:{32 * it}")
            k(f"ds_read_b64_tr_b16 {v(DAT + 4 * it + 2, 2)}, v7 offset:{32 * it + 4 * RS}")
        if is_x0:
            k("v_lshl_add_u32 v4, v2, 7, v5")
            k("v_lshlrev_b32 v4, 12, v4")
            k("v_lshl_add_u32 v4, v6, 4, v4")
            k("v_add_u32 v4, s6, v4")
            step = 16 * 4096
        else:
            k(f"v_mul_u32_u24 v4, {8 * NKS2 * 1024}, v2")
            k("v_lshl_add_u32 v4, v3, 4, v4")
            k("v_add_u32 v4, s6, v4")
            step = NKS2 * 1024
        for it in range(8):
            k(f"s_waitcnt lgkmcnt({14 - 2 * it})")
            k(f"buffer_store_dwordx4 {v(DAT + 4 * it, 4)}, v4, s[8:11], 0 offen")
            if it < 7:
                k(f"v_add_u32 v4, {step}, v4")
        k("s_endpgm")

    k("s_waitcnt lgkmcnt(0)")
    k(f"s_sub_u32 s3, s2, {N_KGEN}")
    k("s_lshl_b32 s4, s3, 15")
    k("s_lshl_b32 s5, s3, 8")
    k("s_lshl_b32 s6, s3, 6")
    k.srd(8, 40, WS_X0T, XT_BYTES)
    k.srd(44, 40, WS_ST0, ST_BYTES)
    k.srd(48, 40, WS_ST2, ST_BYTES)
    transpose32(True)

    k.label("prep_not_x0")
    k.fence(2)
    k(f"s_cmp_ge_u32 s2, {N_KGEN + N_X0 + N_W1}")
    k("s_cbranch_scc1 prep_w2")

    k("s_waitcnt lgkmcnt(0)")
    k(f"s_sub_u32 s3, s2, {N_KGEN + N_X0}")
    k("s_lshr_b32 s4, s3, 1")
    k("s_and_b32 s5, s3, 1")
    wbytes = D * F * 2
    k("s_cmp_ge_u32 s4, 43")
    k(f"s_cselect_b32 s6, 0, {wbytes}")
    k.srd(8, 32, 0, 0)
    k("s_mov_b32 s10, s6")
    k.srd(12, 34, 0, 0)
    k("s_mov_b32 s14, s6")
    k.srd(44, 40, WS_W1, W1_BYTES)
    k.srd(48, 40, WS_CS, 2 * CS_HALF)
    RS1 = 144
    k(f"s_mul_i32 s6, s5, {256 * F * 2}")
    k("s_lshl_b32 s7, s4, 6")
    k("s_add_u32 s6, s6, s7")
    k("v_lshrrev_b32 v2, 2, v0")
    k("v_and_b32 v3, 3, v0")
    k(f"v_mul_u32_u24 v1, {F * 2}, v2")
    k("v_lshl_add_u32 v1, v3, 4, v1")
    GA, UA, TI = 8, 24, 40
    for j in range(4):
        if j:
            k(f"s_add_u32 s6, s6, {64 * F * 2}")
        k(f"buffer_load_dwordx4 {v(GA + 4 * j, 4)}, v1, s[8:11], s6 offen")
        k(f"buffer_load_dwordx4 {v(UA + 4 * j, 4)}, v1, s[12:15], s6 offen")
    k(f"v_mul_u32_u24 v4, {RS1}, v2")
    k("v_lshl_add_u32 v4, v3, 5, v4")
    for j in range(4):
        k(f"s_waitcnt vmcnt({6 - 2 * j})")
        for q in range(4):
            k(f"v_mov_b32 {v(TI + 8 * (j & 1) + 2 * q)}, {v(GA + 4 * j + q)}")
            k(f"v_mov_b32 {v(TI + 8 * (j & 1) + 2 * q + 1)}, {v(UA + 4 * j + q)}")
        k(f"ds_write_b128 v4, {v(TI + 8 * (j & 1), 4)} offset:{64 * j * RS1}")
        k(f"ds_write_b128 v4, {v(TI + 8 * (j & 1) + 4, 4)} offset:{64 * j * RS1 + 16}")
    k("s_waitcnt lgkmcnt(0)")
    k("s_barrier")
    k("v_lshrrev_b32 v2, 6, v0")
    k("v_and_b32 v5, 15, v0")
    k("v_bfe_u32 v6, v0, 4, 2")
    k("v_lshrrev_b32 v7, 2, v5")
    k("v_lshl_add_u32 v7, v6, 3, v7")
    k(f"v_mul_u32_u24 v7, {RS1}, v7")
    k("v_lshl_add_u32 v7, v3, 3, v7")
    k("v_lshl_add_u32 v7, v2, 5, v7")
    for ks in range(8):
        k(f"ds_read_b64_tr_b16 {v(GA + 4 * ks, 2)}, v7 offset:{32 * ks * RS1}")
        k(f"ds_read_b64_tr_b16 {v(GA + 4 * ks + 2, 2)}, v7 offset:{32 * ks * RS1 + 4 * RS1}")
    k("s_lshl_b32 s6, s4, 16")
    k("s_lshl_b32 s7, s5, 13")
    k("s_add_u32 s6, s6, s7")
    k("v_and_b32 v3, 63, v0")
    k("v_lshlrev_b32 v4, 14, v2")
    k("v_lshl_add_u32 v4, v3, 4, v4")
    k("v_add_u32 v1, 0x1000, v4")
    k(f"s_mov_b32 s7, 0x{ONES_BF16:08x}")
    k(f"v_mov_b32 {v(TI)}, 0")
    for ks in range(8):
        k(f"s_waitcnt lgkmcnt({14 - 2 * ks})")
        base = "v4" if ks < 4 else "v1"
        k(f"buffer_store_dwordx4 {v(GA + 4 * ks, 4)}, {base}, s[44:47], s6 offen offset:{(ks & 3) * 1024}")
        for q in range(4):
            k(f"v_dot2_f32_bf16 {v(TI)}, {v(GA + 4 * ks + q)}, s7, {v(TI)}")
    row4_sum(k, TI, TI + 1)
    k(f"s_mul_i32 s6, s5, {CS_HALF}")
    k("s_lshl_b32 s7, s4, 8")
    k("s_add_u32 s6, s6, s7")
    k("v_lshlrev_b32 v4, 6, v2")
    k("v_lshl_add_u32 v4, v5, 2, v4")
    k("v_cmp_gt_u32 vcc, 16, v3")
    k("s_and_saveexec_b64 s[14:15], vcc")
    k(f"buffer_store_dword {v(TI)}, v4, s[48:51], s6 offen")
    k("s_endpgm")

    k.label("prep_w2")
    k.fence(2)
    k("s_waitcnt lgkmcnt(0)")
    k(f"s_sub_u32 s3, s2, {N_KGEN + N_X0 + N_W1}")
    k("s_lshl_b32 s4, s3, 15")
    k("s_lshl_b32 s6, s3, 10")
    k.srd(8, 40, WS_W2, W2_BYTES)
    transpose32(False)

    k.label("prep_done")
    k("s_endpgm")
    return k


def build(kernels, launches, path):
    hdr = open("interleave_layers__ssm_conv_s4__swiglu_ffn__prompt.s.ref").read().split("\n")
    out = []
    for line in hdr:
        if line.startswith("; Override") or line.startswith("; grid=") or "@launch" in line:
            continue
        if not line.startswith(";"):
            break
        out.append(line)
    for (name, grid, block, lds) in launches:
        out.append(f"; @launch kernel={name} grid=({grid},1,1) block=({block},1,1) lds={lds}")
    out.append('.amdgcn_target "amdgcn-amd-amdhsa--gfx950"')
    out.append(".text")
    for k in kernels:
        out.append(k.text())
    out.append('.section .rodata,"a"')
    for k in kernels:
        out.append(".p2align 6")
        out.append(k.descriptor())
    open(path, "w").write("\n".join(out))


if __name__ == "__main__":
    kernels = [gen_prep()]
    launches = [("prep_kernel", PREP_GRID, 256, PREP_LDS)]
    try:
        import gen2
        gen2.extend(kernels, launches)
    except ImportError:
        pass
    path = sys.argv[1] if len(sys.argv) > 1 else "interleave_layers__ssm_conv_s4__swiglu_ffn__prompt.s"
    build(kernels, launches, path)
    for k in kernels:
        print(k.name, "vgpr", k.maxv + 1, "agpr", k.maxa + 1, "sgpr", k.maxs + 1, "lines", len(k.lines))
```

```python
import re

TRANS = ("v_exp_f32", "v_log_f32", "v_rcp_f32", "v_rsq_f32", "v_sqrt_f32", "v_sin_f32", "v_cos_f32",
         "v_rcp_iflag_f32")

REG_RE = re.compile(r"^(-|abs\(|-abs\(|\|)?([vas])(\d+|\[(\d+):(\d+)\])\)?\|?$")


def parse_reg(tok):
    tok = tok.strip()
    if tok in ("vcc", "vcc_lo", "vcc_hi"):
        return ("s", [106, 107])
    if tok in ("exec", "exec_lo", "exec_hi"):
        return ("s", [126, 127])
    if tok == "m0":
        return ("s", [124])
    m = REG_RE.match(tok)
    if not m:
        return None
    kind = m.group(2)
    if m.group(4) is not None:
        lo, hi = int(m.group(4)), int(m.group(5))
        return (kind, list(range(lo, hi + 1)))
    return (kind, [int(m.group(3))])


def v(i, n=1):
    return f"v{i}" if n == 1 else f"v[{i}:{i + n - 1}]"


def a(i, n=1):
    return f"a{i}" if n == 1 else f"a[{i}:{i + n - 1}]"


def s(i, n=1):
    return f"s{i}" if n == 1 else f"s[{i}:{i + n - 1}]"


def mfma_passes(op):
    if "32x32x16" in op or "32x32x8" in op or "32x32x32" in op:
        return ("xdl", 8)
    if "16x16x32" in op or "16x16x16" in op or "16x16x64" in op:
        return ("xdl", 4)
    if op == "v_mfma_f32_16x16x4_f32":
        return ("sgemm", 8)
    if op == "v_mfma_f32_32x32x2_f32":
        return ("sgemm", 16)
    raise ValueError(op)


class Inst:
    __slots__ = ("pos", "cls", "op", "wv", "rv", "ws", "rs", "mf", "srcc", "stdata", "dpp")


class Kernel:
    def __init__(self, name):
        self.name = name
        self.lines = []
        self.hist = []
        self.pos = 0
        self.maxv = 0
        self.maxa = -1
        self.maxs = 0
        self.nlabel = 0

    def raw(self, text):
        self.lines.append(text)

    def comment(self, text):
        self.lines.append(f"    ; {text}")

    def label(self, name):
        self.lines.append(f"{name}:")

    def newlabel(self, stem="L"):
        self.nlabel += 1
        return f"{self.name}_{stem}{self.nlabel}"

    def fence(self, n=16):
        self.nop(n)

    def nop(self, n):
        while n > 0:
            c = min(n, 16)
            self.lines.append(f"    s_nop {c - 1}")
            self.pos += c
            n -= c

    def _parse(self, text):
        t = text.split(";")[0].strip()
        sp = t.split(None, 1)
        op = sp[0]
        rest = sp[1] if len(sp) > 1 else ""
        ops = []
        depth = 0
        cur = ""
        for ch in rest:
            if ch == "[":
                depth += 1
            if ch == "]":
                depth -= 1
            if ch == "," and depth == 0:
                ops.append(cur.strip())
                cur = ""
            else:
                cur += ch
        if cur.strip():
            ops.append(cur.strip())
        mods = []
        if ops:
            parts = ops[-1].split()
            ops[-1] = parts[0]
            mods = parts[1:]
        return op, ops, mods

    def __call__(self, text):
        op, ops, mods = self._parse(text)
        I = Inst()
        I.op = op
        I.wv, I.rv, I.ws, I.rs = set(), set(), set(), set()
        I.mf = None
        I.srcc = set()
        I.stdata = set()
        I.dpp = any(m.startswith(("row_", "quad_perm", "wave_")) for m in mods) or op.endswith("_dpp")
        regs = [parse_reg(o) for o in ops]

        def key(r):
            return [(i + 1000) if r[0] == "a" else i for i in r[1]]

        def add_read(r):
            if r is None:
                return
            if r[0] == "s":
                I.rs.update(r[1])
            else:
                I.rv.update(key(r))

        def add_write(r):
            if r is None:
                return
            if r[0] == "s":
                I.ws.update(r[1])
            else:
                I.wv.update(key(r))

        for r in regs:
            if r is None:
                continue
            if r[0] == "v":
                self.maxv = max(self.maxv, max(r[1]))
            elif r[0] == "a":
                self.maxa = max(self.maxa, max(r[1]))
            elif r[0] == "s" and max(r[1]) < 102:
                self.maxs = max(self.maxs, max(r[1]))

        base = op.replace("_e32", "").replace("_e64", "").replace("_dpp", "")
        if op.startswith("v_mfma"):
            I.cls = "mfma"
            I.mf = mfma_passes(op)
            add_write(regs[0])
            for r in regs[1:]:
                add_read(r)
            if regs[3] is not None:
                I.srcc = set(key(regs[3]))
        elif op.startswith("v_"):
            I.cls = "trans" if base in TRANS else "valu"
            if base.startswith("v_permlane") and "swap" in base:
                for r in regs[:2]:
                    add_read(r)
                    add_write(r)
            elif base.startswith("v_cmp"):
                add_write(regs[0])
                for r in regs[1:]:
                    add_read(r)
            elif base in ("v_add_co_u32", "v_sub_co_u32", "v_addc_co_u32", "v_subb_co_u32"):
                add_write(regs[0])
                add_write(regs[1])
                for r in regs[2:]:
                    add_read(r)
            else:
                add_write(regs[0])
                for r in regs[1:]:
                    add_read(r)
                if base in ("v_fmac_f32", "v_dot2c_f32_bf16", "v_pk_fmac_f16") or I.dpp or "sdwa" in op:
                    add_read(regs[0])
                if base == "v_cndmask_b32" and len(ops) == 3:
                    I.rs.update([106, 107])
        elif op.startswith(("buffer_", "global_", "flat_")):
            I.cls = "vmem"
            is_lds = "lds" in mods or "_lds_" in op
            if "load" in op and not is_lds:
                add_write(regs[0])
                for r in regs[1:]:
                    add_read(r)
                if "d16" in op:
                    add_read(regs[0])
            elif is_lds:
                for r in regs:
                    add_read(r)
                I.rs.add(124)
            else:
                for r in regs:
                    add_read(r)
                if op.startswith("buffer_"):
                    d = regs[0]
                else:
                    d = regs[1]
                if d is not None and len(d[1]) >= 3:
                    I.stdata = set(key(d))
        elif op.startswith("ds_"):
            I.cls = "ds"
            if op.startswith(("ds_read", "ds_bpermute", "ds_permute", "ds_swizzle")):
                add_write(regs[0])
                for r in regs[1:]:
                    add_read(r)
            else:
                for r in regs:
                    add_read(r)
        elif op.startswith("s_"):
            I.cls = "salu"
            if op.startswith(("s_cmp", "s_cbranch", "s_branch", "s_waitcnt", "s_barrier", "s_nop", "s_endpgm",
                              "s_setprio", "s_sleep")):
                for r in regs:
                    add_read(r)
            elif op.startswith(("s_load", "s_memtime", "s_memrealtime")):
                add_write(regs[0])
                for r in regs[1:]:
                    add_read(r)
            else:
                add_write(regs[0])
                for r in regs[1:]:
                    add_read(r)
                if "saveexec" in op:
                    I.ws.update([126, 127])
        else:
            raise ValueError("unknown op " + op)

        need = self._required(I)
        if need > 0:
            self.nop(need)
        I.pos = self.pos
        if op == "s_nop":
            self.pos += int(ops[0]) + 1
        else:
            self.pos += 1
        self.hist.append(I)
        if len(self.hist) > 40:
            self.hist.pop(0)
        self.lines.append("    " + text)

    def _required(self, I):
        need = 0
        isvalu = I.cls in ("valu", "trans")
        base = I.op.replace("_e32", "").replace("_e64", "").replace("_dpp", "")
        for P in self.hist:
            dist = self.pos - P.pos - 1
            req = 0
            pvalu = P.cls in ("valu", "trans")
            if pvalu:
                if I.cls == "mfma" and (P.wv & I.rv):
                    req = max(req, 2)
                if I.dpp and (P.wv & I.rv):
                    req = max(req, 2)
                if base.startswith("v_permlane") and (P.wv & I.rv):
                    req = max(req, 2)
                if base in ("v_readfirstlane_b32", "v_readlane_b32") and (P.wv & I.rv):
                    req = max(req, 1)
                if P.cls == "trans" and I.cls in ("valu", "mfma") and (P.wv & I.rv):
                    req = max(req, 1)
                if P.cls == "trans" and I.cls in ("vmem", "ds") and (P.wv & I.rv):
                    req = max(req, 1)
                if P.ws:
                    if isvalu and (P.ws & I.rs):
                        req = max(req, 2)
                    if base in ("v_readlane_b32", "v_writelane_b32") and (P.ws & I.rs):
                        req = max(req, 4)
                    if I.cls == "vmem" and (P.ws & I.rs):
                        req = max(req, 5)
                    if I.cls == "salu" and (P.ws & I.rs):
                        req = max(req, 1)
                    if (P.ws & {126, 127}):
                        if I.dpp:
                            req = max(req, 5)
                        if I.cls == "mfma":
                            req = max(req, 4)
            if P.cls == "salu" and 124 in P.ws and 124 in I.rs and I.cls in ("vmem", "ds"):
                req = max(req, 1)
            if P.cls == "salu" and (P.ws & {126, 127}) and (I.dpp or base.startswith("v_permlane")):
                req = max(req, 1)
            if P.stdata and (P.stdata & I.wv):
                req = max(req, 2 if isvalu else 1)
            if P.cls == "mfma":
                kind, passes = P.mf
                idx = {2: 0, 4: 1, 8: 2, 16: 3}[passes]
                D = P.wv
                if I.cls == "mfma":
                    ikind, ipasses = I.mf
                    ab = I.rv - I.srcc if I.srcc else I.rv
                    if D & ab:
                        req = max(req, (5, 8, 12, 20)[idx] if kind == "xdl" else (4, 6, 10, 18)[idx])
                    if D & I.srcc:
                        if D == I.srcc and kind == ikind and passes == ipasses:
                            req = max(req, 2 if passes == 2 else 0)
                        else:
                            if kind == "xdl":
                                req = max(req, (4, 6, 10, 18)[idx])
                            else:
                                req = max(req, 0 if ikind == "xdl" else (2, 4, 8, 16)[idx])
                    elif D & I.wv:
                        req = max(req, (5, 8, 12, 20)[idx] if kind == "xdl" else (4, 6, 10, 18)[idx])
                else:
                    if (D & I.rv) or (D & I.wv):
                        req = max(req, (5, 8, 12, 20)[idx] if kind == "xdl" else (4, 6, 10, 18)[idx])
                    if kind == "xdl" and isvalu and (P.srcc & I.wv):
                        req = max(req, (1, 3, 7, 15)[idx])
            if req > dist:
                need = max(need, req - dist)
        return need

    def text(self):
        out = [f".globl {self.name}", ".p2align 8", f".type {self.name},@function", f"{self.name}:"]
        out += self.lines
        return "\n".join(out) + "\n"

    def descriptor(self, vgpr=None, sgpr=None):
        nv = self.maxv + 1
        acc = (nv + 3) // 4 * 4
        tot = acc + (self.maxa + 1) if self.maxa >= 0 else nv
        if vgpr is not None:
            tot = max(tot, vgpr)
        ns = max(self.maxs + 1, 16) if sgpr is None else sgpr
        return f""".amdhsa_kernel {self.name}
  .amdhsa_next_free_vgpr {tot}
  .amdhsa_next_free_sgpr {ns}
  .amdhsa_accum_offset {acc}
  .amdhsa_group_segment_fixed_size 0
  .amdhsa_kernarg_size 128
  .amdhsa_user_sgpr_count 2
  .amdhsa_user_sgpr_kernarg_segment_ptr 1
  .amdhsa_system_sgpr_workgroup_id_x 1
.end_amdhsa_kernel
"""

    STAMP0 = 60

    def stamp(self, *cnts, real=False):
        if not getattr(self, "diag", False):
            return
        n = getattr(self, "nstamp", 0)
        assert n < 18
        self.nstamp = n + 1
        r = self.STAMP0 + 2 * n
        self(f"{'s_memrealtime' if real else 's_memtime'} {s(r, 2)}")
        self("s_waitcnt lgkmcnt(0)")
        for c in cnts:
            c.q = []

    def dump_stamps(self, ws_lo, off):
        if not getattr(self, "diag", False):
            return
        n = self.nstamp
        self("s_mov_b64 exec, -1")
        self.srd(96, ws_lo, off, 0x400000)
        self("v_lshrrev_b32 v1, 6, v0")
        self("v_lshlrev_b32 v1, 8, v1")
        self("s_lshl_b32 s100, s2, 12")
        self("v_cmp_eq_u32 vcc, 0, v2" if False else "v_and_b32 v2, 63, v0")
        self("v_cmp_eq_u32 vcc, 0, v2")
        self("s_and_saveexec_b64 s[58:59], vcc")
        for i in range(n):
            self(f"v_mov_b32 v2, {s(self.STAMP0 + 2 * i)}")
            self(f"v_mov_b32 v3, {s(self.STAMP0 + 2 * i + 1)}")
            self(f"buffer_store_dwordx2 v[2:3], v1, s[96:99], s100 offen offset:{8 * i}")
            self.nop(2)

    def srd(self, dst, base_lo, off, size):
        if off:
            self(f"s_add_u32 {s(dst)}, {s(base_lo)}, 0x{off:x}")
            self(f"s_addc_u32 {s(dst + 1)}, {s(base_lo + 1)}, 0")
        else:
            self(f"s_mov_b32 {s(dst)}, {s(base_lo)}")
            self(f"s_mov_b32 {s(dst + 1)}, {s(base_lo + 1)}")
        self(f"s_mov_b32 {s(dst + 2)}, 0x{size:x}")
        self(f"s_mov_b32 {s(dst + 3)}, 0x00020000")
```

```python
from asmlib import Kernel, a, s, v
from gen import *


class Cnt:
    def __init__(self, k, name, maxn):
        self.k, self.name, self.maxn = k, name, maxn
        self.q = []

    def issue(self, tag):
        if len(self.q) >= self.maxn:
            self.wait_n(self.maxn - 1)
        self.q.append(tag)

    def wait_n(self, n):
        if len(self.q) > n:
            self.k(f"s_waitcnt {self.name}({n})")
            self.q = self.q[len(self.q) - n:] if n else []

    def wait(self, tag):
        if tag in self.q:
            i = max(j for j, t in enumerate(self.q) if t == tag)
            self.wait_n(len(self.q) - 1 - i)

    def drain(self):
        self.wait_n(0)


def unpack(k, dst, src, hi):
    if hi:
        k(f"v_and_b32 {v(dst)}, 0xffff0000, {v(src)}")
    else:
        k(f"v_lshlrev_b32 {v(dst)}, 16, {v(src)}")


def round_pairs(k, regs, tmp):
    for i in range(0, len(regs), 2):
        k(f"v_cvt_pk_bf16_f32 {v(tmp)}, {v(regs[i])}, {v(regs[i + 1])}")
        unpack(k, regs[i], tmp, 0)
        unpack(k, regs[i + 1], tmp, 1)


def ln_stats(k, S, n, MB, RI, tmp):
    for j in range(n):
        k(f"v_mul_f32 {v(S + 2 * j)}, {hx(1.0 / D)}, {v(S + 2 * j)}")
        k(f"v_mul_f32 {v(S + 2 * j + 1)}, {hx(1.0 / D)}, {v(S + 2 * j + 1)}")
        k(f"v_fma_f32 {v(S + 2 * j + 1)}, -{v(S + 2 * j)}, {v(S + 2 * j)}, {v(S + 2 * j + 1)}")
        k(f"v_max_f32 {v(S + 2 * j + 1)}, 0, {v(S + 2 * j + 1)}")
        k(f"v_cvt_pk_bf16_f32 {v(tmp)}, {v(S + 2 * j)}, {v(S + 2 * j + 1)}")
        unpack(k, MB + j, tmp, 0)
        unpack(k, RI + j, tmp, 1)
        k(f"v_add_f32 {v(RI + j)}, {hx(1e-5)}, {v(RI + j)}")
    round_pairs(k, [RI + j for j in range(n)], tmp)
    for j in range(n):
        k(f"v_sqrt_f32 {v(RI + j)}, {v(RI + j)}")
    round_pairs(k, [RI + j for j in range(n)], tmp)
    for j in range(n):
        k(f"v_rcp_f32 {v(RI + j)}, {v(RI + j)}")


KOFF = 512
UOFF = KOFF + KR_CH
UST = 4640
CONV_LDS = UOFF + 8 * UST


def gen_conv(name, ws_xin, ws_st, ws_xout):
    k = Kernel(name)
    k.diag = DIAG == name
    done = f"{name}_done"
    k("s_load_dwordx2 s[4:5], s[0:1], 120")
    k("s_load_dwordx2 s[6:7], s[0:1], 64")
    k(f"s_cmp_ge_u32 s2, {D}")
    k(f"s_cbranch_scc1 {done}")
    k.stamp(real=True)
    k.stamp()
    X, H = 4, 8
    S = 16
    MB, RI = 32, 40
    XF = 48
    TMP = 56
    XO = 136
    HB = 140
    k("v_lshlrev_b32 v1, 4, v0")
    k("v_lshlrev_b32 v2, 6, v0")
    k("v_and_b32 v3, 63, v0")
    k("v_lshlrev_b32 v3, 4, v3")
    k("v_readfirstlane_b32 s24, v0")
    k("s_lshr_b32 s24, s24, 6")
    k("s_lshl_b32 s26, s2, 8")
    k(f"s_mul_i32 s27, s2, {KR_CH}")
    k("s_lshr_b32 s28, s2, 1")
    k("s_lshl_b32 s28, s28, 2")
    k("s_waitcnt lgkmcnt(0)")
    k("s_load_dword s29, s[6:7], s28")
    k.srd(8, 4, ws_xin, XT_BYTES)
    k.srd(12, 4, ws_st, ST_BYTES)
    k(f"s_add_u32 s30, s27, 0x{WS_KR:x}")
    k("s_add_u32 s16, s4, s30")
    k("s_addc_u32 s17, s5, 0")
    k(f"s_mov_b32 s18, {KR_CH}")
    k("s_mov_b32 s19, 0x00020000")
    k.srd(20, 4, ws_xout, XT_BYTES)
    k("s_mov_b32 s33, s26")
    k(f"s_load_dword s32, s[16:17], {KR_PART}")
    k(f"v_lshrrev_b32 {v(XO)}, 4, v0")
    k(f"v_lshlrev_b32 {v(XO)}, 17, {v(XO)}")
    k("v_and_b32 v1, 15, v0")
    k(f"v_lshl_add_u32 {v(XO)}, v1, 4, {v(XO)}")
    k(f"buffer_load_dwordx4 {v(X, 4)}, {v(XO)}, s[8:11], s33 offen")
    for j in range(4):
        k(f"buffer_load_dwordx4 {v(S + 4 * j, 4)}, v2, s[12:15], 0 offen offset:{16 * j}")
    k("s_lshl_b32 s25, s24, 10")
    k(f"s_add_u32 m0, s25, {KOFF}")
    k("buffer_load_dwordx4 v3, s[16:19], s25 offen lds")
    k("s_cmp_lg_u32 s24, 0")
    k(f"s_cbranch_scc1 {name}_nok8")
    k("s_mov_b32 s25, 4096")
    k(f"s_mov_b32 m0, {KOFF + 4096}")
    k("buffer_load_dwordx4 v3, s[16:19], s25 offen lds")
    k.label(f"{name}_nok8")
    for r in range(4):
        k(f"v_mov_b32 {v(TMP + r)}, 0")
    k("v_lshrrev_b32 v1, 5, v0")
    k("v_and_b32 v2, 31, v0")
    k(f"v_mul_u32_u24 v1, {UST}, v1")
    k("v_cmp_eq_u32 vcc, 20, v2")
    k("v_mov_b32 v3, 276")
    k("v_cndmask_b32 v3, v2, v3, vcc")
    k("v_lshl_add_u32 v1, v3, 4, v1")
    k("v_cmp_gt_u32 vcc, 21, v2")
    k("s_and_saveexec_b64 s[30:31], vcc")
    k(f"ds_write_b128 v1, {v(TMP, 4)} offset:{UOFF}")
    k("s_mov_b64 exec, s[30:31]")
    k("s_waitcnt vmcnt(1)")
    k.stamp()
    ln_stats(k, S, 8, MB, RI, TMP + 4)
    for j in range(8):
        unpack(k, XF + j, X + j // 2, j & 1)
        k(f"v_sub_f32 {v(XF + j)}, {v(XF + j)}, {v(MB + j)}")
    round_pairs(k, [XF + j for j in range(8)], TMP + 4)
    for j in range(8):
        k(f"v_mul_f32 {v(XF + j)}, {v(XF + j)}, {v(RI + j)}")
    for j in range(4):
        k(f"v_cvt_pk_bf16_f32 {v(HB + j)}, {v(XF + 2 * j)}, {v(XF + 2 * j + 1)}")
    for j in range(8):
        unpack(k, XF + j, HB + j // 2, j & 1)
    for j in range(4):
        k(f"v_cvt_pk_f16_f32 {v(H + j)}, {v(XF + 2 * j)}, {v(XF + 2 * j + 1)}")
    k("v_lshlrev_b32 v1, 4, v0")
    k(f"ds_write_b128 v1, {v(H, 4)} offset:{UOFF + 320}")
    k("s_waitcnt lgkmcnt(0)")
    k("s_barrier")
    k.stamp()
    k(f"ds_read_b128 {v(H + 4, 4)}, v1 offset:{UOFF + 336}")
    k("v_and_b32 v2, 7, v0")
    k("v_lshrrev_b32 v3, 3, v0")
    k(f"v_lshlrev_b32 {v(TMP)}, 1, v2")
    k(f"v_mul_u32_u24 {v(TMP + 1)}, {UST - 2}, v3")
    k(f"v_add_u32 {v(TMP + 1)}, {v(TMP + 1)}, {v(TMP)}")
    k("v_cmp_lt_u32 vcc, v2, v3")
    k("v_cmp_gt_u32 s[30:31], 64, v0")
    k("s_and_b64 vcc, vcc, s[30:31]")
    k("s_and_saveexec_b64 s[30:31], vcc")
    k(f"ds_read_u16 {v(TMP + 2)}, {v(TMP)} offset:{UOFF + 320}")
    k("s_waitcnt lgkmcnt(0)")
    k(f"ds_write_b16 {v(TMP + 1)}, {v(TMP + 2)} offset:{UOFF + 19 * 16 + 16}")
    k("s_mov_b64 exec, s[30:31]")
    k("s_waitcnt lgkmcnt(0)")
    T2 = 16
    for r in range(1, 8):
        sidx = r // 2
        dst = T2 + 4 * (r - 1)
        if r == 4:
            src = H + 2
        elif r & 1:
            for j in range(4):
                k(f"v_alignbit_b32 {v(dst + j)}, {v(H + sidx + j + 1)}, {v(H + sidx + j)}, 16")
            src = dst
        else:
            for j in range(4):
                k(f"v_mov_b32 {v(dst + j)}, {v(H + sidx + j)}")
            src = dst
        k(f"ds_write_b128 v1, {v(src, 4)} offset:{UOFF + r * UST + 320}")
    VA, VB = 12, 13
    k("v_and_b32 v2, 15, v0")
    k("v_bfe_u32 v3, v0, 4, 2")
    k(f"v_sub_u32 {v(VA)}, v3, v2")
    k(f"v_lshlrev_b32 {v(VA)}, 4, {v(VA)}")
    k("s_lshl_b32 s25, s24, 6")
    k(f"s_sub_u32 s26, {KOFF + 48 + 192}, s25")
    k(f"v_add_u32 {v(VA)}, s26, {v(VA)}")
    k(f"v_and_b32 {v(TMP)}, 7, v2")
    k(f"v_mul_u32_u24 {v(VB)}, {UST}, {v(TMP)}")
    k(f"v_lshrrev_b32 {v(TMP + 1)}, 3, v2")
    k(f"v_lshl_add_u32 {v(VB)}, {v(TMP + 1)}, 8, {v(VB)}")
    k(f"v_lshl_add_u32 {v(VB)}, v3, 4, {v(VB)}")
    k(f"s_sub_u32 s26, {UOFF + 320 - 512 + 192}, s25")
    k(f"v_add_u32 {v(VB)}, s26, {v(VB)}")
    VA2, VB2 = 14, 15
    k(f"v_subrev_u32 {v(VA2)}, 256, {v(VA)}")
    k(f"v_subrev_u32 {v(VB2)}, 256, {v(VB)}")
    ACC = 32
    AR = 64
    BR = 100
    for r in range(32):
        k(f"v_mov_b32 {v(ACC + r)}, 0")
    k("s_waitcnt vmcnt(0) lgkmcnt(0)")
    k("s_barrier")
    k.stamp()
    lg = Cnt(k, "lgkmcnt", 15)

    def areg(slot, part):
        return AR + slot * 4

    def loadA(ps, kk, slot):
        for part in range(1):
            lg.issue(("A", ps, kk, part))
            k(f"ds_read_b128 {v(areg(slot, part), 4)}, {v(VA if ps == 0 else VA2)} offset:{512 * (8 - kk)}")

    def loadB(ps, m):
        slot = m if m >= 0 else 8
        lg.issue(("B", ps, m))
        k(f"ds_read_b128 {v(BR + 4 * slot, 4)}, {v(VB if ps == 0 else VB2)} offset:{512 * (m + 1)}")

    def mm(ps, t, kk, slot, m):
        bslot = m if m >= 0 else 8
        lg.wait(("B", ps, m))
        for part in range(1):
            lg.wait(("A", ps, kk, part))
            k(f"v_mfma_f32_16x16x32_f16 {v(ACC + 4 * t, 4)}, {v(areg(slot, part), 4)}, {v(BR + 4 * bslot, 4)}, {v(ACC + 4 * t, 4)}")

    loadB(0, 0)
    for kk in range(7):
        loadA(0, kk, kk)
    for m in range(8):
        for kk in range(8 - m):
            mm(0, m + kk, kk, kk, m)
            if m == 0 and kk == 0:
                loadA(0, 7, 7)
            if m == 0 and 1 <= kk <= 7:
                loadB(0, kk)
        if m == 0:
            lg.drain()
            k("s_cmp_lg_u32 s24, 0")
            k(f"s_cbranch_scc1 {name}_noext")
            loadA(0, 8, 8)
            loadB(0, -1)
            for t in range(8):
                mm(0, t, t + 1, t + 1, -1)
            lg.drain()
            k.label(f"{name}_noext")
        loadB(1, m)
        loadA(1, m, 7 - m)
    for m in range(8):
        for kk in range(8 - m):
            mm(1, m + kk, kk, 7 - kk, m)
    lg.drain()
    k.stamp()
    k("s_barrier")
    ET = 16
    k(f"v_and_b32 {v(ET)}, 7, v2")
    k(f"v_lshrrev_b32 {v(ET + 1)}, 3, v2")
    k(f"v_lshlrev_b32 {v(ET + 2)}, 2, {v(ET)}")
    k(f"v_lshl_add_u32 {v(ET + 2)}, {v(ET + 1)}, 9, {v(ET + 2)}")
    k(f"v_lshl_add_u32 {v(ET + 2)}, v3, 7, {v(ET + 2)}")
    k("s_lshl_b32 s25, s24, 13")
    k(f"v_add_u32 {v(ET + 2)}, s25, {v(ET + 2)}")
    k(f"v_and_b32 {v(ET + 3)}, 1, v3")
    k(f"v_lshl_or_b32 {v(ET + 3)}, {v(ET + 1)}, 1, {v(ET + 3)}")
    for kk in range(4):
        k(f"v_xor_b32 {v(ET + 4 + kk)}, {kk}, {v(ET + 3)}")
        k(f"v_lshl_add_u32 {v(ET + 4 + kk)}, {v(ET + 4 + kk)}, 5, {v(ET + 2)}")
    for t in range(8):
        for kk in range(4):
            k(f"ds_write_b32 {v(ET + 4 + kk)}, {v(ACC + 4 * t + kk)} offset:{UOFF + 1024 * t}")
        if t % 3 == 2:
            k("s_waitcnt lgkmcnt(0)")
    k("s_waitcnt lgkmcnt(0)")
    k("s_barrier")
    k.stamp()
    k("v_bfe_u32 v2, v0, 2, 1")
    k("v_bfe_u32 v3, v0, 4, 1")
    k("v_lshl_or_b32 v2, v3, 1, v2")
    k("v_xor_b32 v2, v2, v0")
    k("v_lshlrev_b32 v2, 5, v2")
    R = 64
    for w in range(4):
        k(f"ds_read_b128 {v(R + 8 * w, 4)}, v2 offset:{UOFF + 8192 * w}")
        k(f"ds_read_b128 {v(R + 8 * w + 4, 4)}, v2 offset:{UOFF + 8192 * w + 16}")
    k("s_and_b32 s25, s2, 1")
    k("s_lshl_b32 s25, s25, 4")
    k("s_lshr_b32 s29, s29, s25")
    k("s_lshl_b32 s29, s29, 16")
    HD = 16
    for j in range(8):
        unpack(k, HD + j, HB + j // 2, j & 1)
        k(f"v_mul_f32 {v(HD + j)}, s29, {v(HD + j)}")
    round_pairs(k, [HD + j for j in range(8)], TMP)
    for j in range(8):
        unpack(k, XF + j, X + j // 2, j & 1)
    k("s_waitcnt lgkmcnt(0)")
    for j in range(8):
        k(f"v_add_f32 {v(R + j)}, {v(R + j)}, {v(R + 8 + j)}")
        k(f"v_add_f32 {v(R + 16 + j)}, {v(R + 16 + j)}, {v(R + 24 + j)}")
        k(f"v_add_f32 {v(R + j)}, {v(R + j)}, {v(R + 16 + j)}")
        k(f"v_mul_f32 {v(R + j)}, s32, {v(R + j)}")
    round_pairs(k, [R + j for j in range(8)], TMP)
    for j in range(8):
        k(f"v_add_f32 {v(R + j)}, {v(R + j)}, {v(HD + j)}")
    round_pairs(k, [R + j for j in range(8)], TMP)
    for j in range(8):
        k(f"v_add_f32 {v(R + j)}, {v(R + j)}, {v(XF + j)}")
    for j in range(4):
        k(f"v_cvt_pk_bf16_f32 {v(TMP + j)}, {v(R + 2 * j)}, {v(R + 2 * j + 1)}")
    k(f"buffer_store_dwordx4 {v(TMP, 4)}, {v(XO)}, s[20:23], s33 offen")
    k.stamp()
    k.stamp(real=True)
    k.dump_stamps(4, WS_DIAG)
    k.label(done)
    k("s_endpgm")
    return k


def extend(kernels, launches):
    kernels.append(gen_conv("conv1_kernel", WS_X0T, WS_ST0, WS_X1T))
    launches.append(("conv1_kernel", D, 256, CONV_LDS))
    try:
        import gen3
        gen3.extend(kernels, launches)
    except ImportError:
        pass
```

```python
from asmlib import Kernel, a, s, v
from gen import *
from gen2 import Cnt, unpack, round_pairs, ln_stats, gen_conv, CONV_LDS

import os
EXP = os.environ.get('EXP', '')
OOB = 0x40000000
G1_STAT = 131072
GLT = GKS * 1024


STG = 40960
G1_LDS = 4 * STG


def gen_gemm1(name, ws_xin):
    k = Kernel(name)
    k.diag = DIAG == name
    done = f"{name}_done"
    k("s_load_dwordx2 s[4:5], s[0:1], 120")
    k("s_cmp_ge_u32 s2, 256")
    k(f"s_cbranch_scc1 {done}")
    k.stamp(real=True)
    k.stamp()
    k("v_readfirstlane_b32 s47, v0")
    k("s_lshr_b32 s47, s47, 6")
    k("s_lshr_b32 s46, s47, 2")
    k("s_and_b32 s24, s47, 3")
    k("s_and_b32 s25, s2, 7")
    k("s_lshr_b32 s26, s2, 3")
    k("s_lshr_b32 s27, s25, 1")
    k("s_lshl_b32 s27, s27, 2")
    k("s_and_b32 s28, s26, 3")
    k("s_add_u32 s27, s27, s28")
    k("s_and_b32 s28, s25, 1")
    k("s_lshl_b32 s28, s28, 3")
    k("s_lshr_b32 s29, s26, 2")
    k("s_add_u32 s28, s28, s29")
    k("s_mul_i32 s29, s28, 11")
    k("s_mul_i32 s30, s24, 3")
    k("s_add_u32 s29, s29, s30")
    SA, SG, SC = 32, 36, 40
    for mt in range(3):
        k(f"s_add_u32 s30, s29, {mt}")
        k(f"s_lshl_b32 {s(SA + mt)}, s30, 14")
        k(f"s_lshl_b32 {s(SC + mt)}, s30, 6")
        k("s_lshr_b32 s31, s30, 2")
        k("s_lshl_b32 s31, s31, 10")
        k("s_and_b32 s30, s30, 3")
        k("s_lshl_b32 s30, s30, 8")
        k("s_add_u32 s31, s31, s30")
        k(f"s_mul_i32 s30, s27, {8 * GLT}")
        k(f"s_add_u32 {s(SG + mt)}, s31, s30")
    k("s_cmp_eq_u32 s24, 3")
    k(f"s_cselect_b32 {s(SA + 2)}, 0x{NPT * 16384:x}, {s(SA + 2)}")
    k(f"s_cselect_b32 {s(SG + 2)}, 0x{OOB:x}, {s(SG + 2)}")
    k(f"s_cselect_b32 {s(SC + 2)}, 0x{OOB:x}, {s(SC + 2)}")
    k("s_lshl_b32 s30, s46, 10")
    for mt in range(3):
        k(f"s_add_u32 {s(SA + mt)}, {s(SA + mt)}, s30")
        if mt:
            k(f"s_sub_u32 {s(SA + mt)}, {s(SA + mt)}, {mt * 1024}")
    VB, VA = 8, 16
    GR, CSR, CS2 = 20, 24, 36
    ACC = 48
    AF, BF = 96, 120
    k("v_and_b32 v3, 63, v0")
    k("v_lshlrev_b32 v1, 4, v3")
    k("v_lshrrev_b32 v4, 4, v3")
    k("v_and_b32 v5, 15, v3")
    k("s_and_b32 s30, s47, 1")
    k("s_lshl_b32 s30, s30, 3")
    k("v_lshlrev_b32 v6, 1, v4")
    k("v_or_b32 v6, s30, v6")
    k("v_xor_b32 v6, v6, v5")
    k("v_lshlrev_b32 v6, 4, v6")
    k("v_lshl_add_u32 v2, v4, 8, v6")
    k("s_lshl_b32 s44, s47, 11")
    k("s_lshl_b32 s31, s27, 17")
    k("s_add_u32 s30, s44, s31")
    k("v_add_u32 v2, s30, v2")
    k(f"s_mul_i32 s45, s46, 12288")
    k("s_mul_i32 s30, s24, 3072")
    k("s_add_u32 s45, s45, s30")
    k("s_add_u32 s45, s45, 16384")
    k("s_waitcnt lgkmcnt(0)")
    k.srd(8, 4, ws_xin, XT_BYTES)
    k.srd(12, 4, WS_W1, W1_BYTES)
    k.srd(16, 4, WS_CS, 2 * CS_HALF)
    k.srd(20, 4, WS_G, G_BYTES)
    vm = Cnt(k, "vmcnt", 60)
    lg = Cnt(k, "lgkmcnt", 15)

    def dma(i, q):
        slot = (i % 4) * STG
        if q == 0:
            k(f"s_add_u32 m0, s44, {slot}")
            k(f"s_mov_b32 s48, {i * 16384}")
        if q < 2:
            vm.issue(("S", i))
            k(f"buffer_load_dwordx4 v2, s[8:11], s48 offen offset:{1024 * q} lds")
            return
        mt = q - 2
        if mt == 0:
            k(f"s_add_u32 m0, s45, {slot}")
        if i:
            k(f"s_add_u32 {s(SA + mt)}, {s(SA + mt)}, 2048")
        vm.issue(("S", i))
        k(f"buffer_load_dwordx4 v1, s[12:15], {s(SA + mt)} offen offset:{1024 * mt} lds")

    PRO = int(os.environ.get('PRO1', '3'))
    for i in range(PRO):
        for q in range(5):
            dma(i, q)
    k("v_lshrrev_b32 v6, 2, v5")
    k("v_and_b32 v7, 1, v4")
    k("v_lshlrev_b32 v7, 3, v7")
    k("v_lshl_or_b32 v7, v6, 1, v7")
    k("v_lshlrev_b32 v7, 4, v7")
    k("v_lshl_add_u32 v6, v4, 3, v6")
    k("v_lshlrev_b32 v6, 8, v6")
    k("v_and_b32 v18, 3, v3")
    k("v_lshl_add_u32 v6, v18, 3, v6")
    k("s_lshl_b32 s49, s46, 2")
    for jl in range(4):
        k(f"s_add_u32 s30, s24, {jl}")
        k("s_and_b32 s30, s30, 3")
        k("s_add_u32 s30, s30, s49")
        k("s_lshl_b32 s30, s30, 5")
        k(f"v_xor_b32 {v(VB + jl)}, s30, v7")
        k(f"v_add_u32 {v(VB + jl)}, {v(VB + jl)}, v6")
        k(f"v_add_u32 {v(VB + 4 + jl)}, {2 * STG}, {v(VB + jl)}")
    k("s_mul_i32 s30, s24, 3072")
    k("s_add_u32 s30, s30, 16384")
    k(f"v_add_u32 {v(VA)}, s30, v1")
    k(f"v_add_u32 {v(VA + 1)}, {2 * STG}, {v(VA)}")
    for r in range(48):
        k(f"v_mov_b32 {v(ACC + r)}, 0")
    for r in range(4):
        k(f"v_mov_b32 {v(GR + r)}, 0")

    def frag_reads(ss):
        i, sub = ss // 2, ss % 2
        slot = i % 4
        vset = slot // 2
        base = (slot % 2) * STG
        par = ss % 2
        out = []
        for mt in range(3):
            def fa(mt=mt):
                lg.issue(("A", ss, mt))
                k(f"ds_read_b128 {v(AF + par * 12 + 4 * mt, 4)}, {v(VA + vset)} offset:{base + sub * 12288 + mt * 1024}")
            out.append(fa)
        for jl in range(4):
            def fb(jl=jl):
                for half in range(2):
                    lg.issue(("B", ss, jl))
                    k(f"ds_read_b64_tr_b16 {v(BF + par * 16 + 4 * jl + 2 * half, 2)}, {v(VB + 4 * vset + jl)} offset:{base + sub * 8192 + half * 1024}")
            out.append(fb)
        return out

    vm.wait(("S", 0))
    k("s_barrier")
    k.stamp(lg)
    for f in frag_reads(0):
        f()
    for i in range(PRO, 4):
        for q in range(5):
            dma(i, q)
    k("v_lshlrev_b32 v6, 4, v4")
    k(f"v_add_u32 v7, {CS_HALF}, v6")
    for ss in range(16):
        i, sub = ss // 2, ss % 2
        par = ss % 2
        pend = []
        if sub == 1 and i + 1 < 8:
            lg.drain()
            vm.wait(("S", i + 1))
            k("s_barrier")
            if i + 4 < 8:
                pend = [(lambda q=q: dma(i + 4, q)) for q in range(5)]
            if i == 4:
                def cs(mt):
                    vm.issue(("CS",))
                    k(f"buffer_load_dwordx4 {v(CSR + 4 * mt, 4)}, v6, s[16:19], {s(SC + mt)} offen")
                    vm.issue(("CS",))
                    k(f"buffer_load_dwordx4 {v(CS2 + 4 * mt, 4)}, v7, s[16:19], {s(SC + mt)} offen")
                pend = [(lambda mt=mt: cs(mt)) for mt in range(3)]
        if ss % 4 == 0:
            k.stamp(lg)
        reads = frag_reads(ss + 1) if ss + 1 < 16 else []
        fill = reads + pend
        n = 0
        for jl in range(4):
            lg.wait(("B", ss, jl))
            for mt in range(3):
                lg.wait(("A", ss, mt))
                acc = ACC + (mt * 4 + jl) * 4
                k(f"v_mfma_f32_16x16x32_bf16 {v(acc, 4)}, {v(AF + par * 12 + 4 * mt, 4)}, {v(BF + par * 16 + 4 * jl, 4)}, {v(acc, 4)}")
                if fill:
                    fill.pop(0)()
            if jl == 0:
                k(f"v_mfma_f32_16x16x32_bf16 {v(GR, 4)}, {v(BF + par * 16, 4)}, {v(BF + par * 16, 4)}, {v(GR, 4)}")
        while fill:
            fill.pop(0)()
    k.stamp(lg)
    lg.drain()
    k("s_barrier")
    JA = AF
    for jl in range(4):
        k(f"s_add_u32 s30, s24, {jl}")
        k("s_and_b32 s30, s30, 3")
        k("s_add_u32 s30, s30, s49")
        k("s_lshl_b32 s31, s30, 4")
        k(f"v_add_u32 {v(JA + jl)}, s31, v5")
        k(f"v_lshlrev_b32 {v(JA + 4 + jl)}, 2, {v(JA + jl)}")
    k("v_and_b32 v7, 3, v5")
    g = GR
    k("v_cmp_eq_u32 vcc, 1, v7")
    k(f"v_cndmask_b32 {v(g)}, {v(g)}, {v(g + 1)}, vcc")
    k("v_cmp_eq_u32 vcc, 2, v7")
    k(f"v_cndmask_b32 {v(g)}, {v(g)}, {v(g + 2)}, vcc")
    k("v_cmp_eq_u32 vcc, 3, v7")
    k(f"v_cndmask_b32 {v(g)}, {v(g)}, {v(g + 3)}, vcc")
    k("v_lshrrev_b32 v7, 2, v5")
    k("v_cmp_eq_u32 vcc, v7, v4")
    k("s_and_saveexec_b64 s[30:31], vcc")
    k(f"ds_write_b32 {v(JA + 4)}, {v(GR)} offset:512")
    k("s_mov_b64 exec, s[30:31]")
    k("s_cmp_lg_u32 s24, 3")
    k(f"s_cbranch_scc1 {name}_nosum")
    k("v_cmp_gt_u32 vcc, 16, v3")
    k("s_and_saveexec_b64 s[30:31], vcc")
    for jl in range(4):
        k(f"ds_write_b32 {v(JA + 4 + jl)}, {v(ACC + (8 + jl) * 4)}")
    k("s_mov_b64 exec, s[30:31]")
    k.label(f"{name}_nosum")
    k("s_waitcnt lgkmcnt(0)")
    k("s_barrier")
    k.stamp()
    ET = BF
    k("v_lshlrev_b32 v7, 3, v3")
    k(f"ds_read_b64 {v(ET + 8, 2)}, v7")
    k(f"ds_read_b64 {v(ET + 10, 2)}, v7 offset:512")
    vm.drain()
    for r in range(0, 12, 2):
        k(f"v_pk_add_f32 {v(CSR + r, 2)}, {v(CSR + r, 2)}, {v(CS2 + r, 2)}")
    k("s_waitcnt lgkmcnt(0)")
    S2 = ET
    k(f"v_mov_b32 {v(S2)}, {v(ET + 8)}")
    k(f"v_mov_b32 {v(S2 + 1)}, {v(ET + 10)}")
    k(f"v_mov_b32 {v(S2 + 2)}, {v(ET + 9)}")
    k(f"v_mov_b32 {v(S2 + 3)}, {v(ET + 11)}")
    MB, RI = ET + 4, ET + 6
    ln_stats(k, S2, 2, MB, RI, ET + 12)
    for j in range(2):
        k(f"v_mov_b32 {v(ET + 8 + 2 * j)}, {v(RI + j)}")
        k(f"v_mul_f32 {v(ET + 9 + 2 * j)}, {v(MB + j)}, {v(RI + j)}")
    k("s_lshl_b32 s30, s47, 10")
    k("s_add_u32 s30, s30, 1024")
    k("v_add_u32 v7, s30, v1")
    k(f"ds_write_b128 v7, {v(ET + 8, 4)}")
    k("s_waitcnt lgkmcnt(0)")
    RM = VB
    for jl in range(4):
        k(f"v_lshl_add_u32 v7, {v(JA + jl)}, 3, s30")
        k(f"ds_read_b64 {v(RM + 2 * jl, 2)}, v7")
    k("v_add_u32 v6, s24, v4")
    k("v_and_b32 v6, 3, v6")
    k("v_add_u32 v6, s49, v6")
    k(f"v_mul_u32_u24 v6, {GLT}, v6")
    k("v_lshl_add_u32 v6, v5, 4, v6")
    k(f"s_mov_b32 s30, {hx(-LOG2E)}")
    k(f"s_mov_b32 s31, {hx(-LOG2E)}")
    k("s_waitcnt lgkmcnt(0)")
    for mt in range(3):
        Ts = [ET + 16 + 4 * j for j in range(4)]
        Es = [ET + 2 * j for j in range(4)]
        OUT = ET + 8 + 4 * (mt % 2)
        for jl, T in enumerate(Ts):
            rm = v(RM + 2 * jl, 2)
            k(f"v_pk_mul_f32 {v(T, 2)}, {v(CSR + 4 * mt, 2)}, {rm} op_sel:[0,1] op_sel_hi:[1,1]")
            k(f"v_pk_mul_f32 {v(T + 2, 2)}, {v(CSR + 4 * mt + 2, 2)}, {rm} op_sel:[0,1] op_sel_hi:[1,1]")
        for jl, T in enumerate(Ts):
            acc = ACC + (mt * 4 + jl) * 4
            rm = v(RM + 2 * jl, 2)
            k(f"v_pk_fma_f32 {v(T, 2)}, {v(acc, 2)}, {rm}, {v(T, 2)} op_sel_hi:[1,0,1] neg_lo:[0,0,1] neg_hi:[0,0,1]")
            k(f"v_pk_fma_f32 {v(T + 2, 2)}, {v(acc + 2, 2)}, {rm}, {v(T + 2, 2)} op_sel_hi:[1,0,1] neg_lo:[0,0,1] neg_hi:[0,0,1]")
        for T, E in zip(Ts, Es):
            k(f"v_pk_mul_f32 {v(E, 2)}, {v(T, 2)}, s[30:31]")
        for E in Es:
            k(f"v_exp_f32 {v(E)}, {v(E)}")
            k(f"v_exp_f32 {v(E + 1)}, {v(E + 1)}")
        for T in Ts:
            k(f"v_pk_mul_f32 {v(T, 2)}, {v(T, 2)}, {v(T + 2, 2)}")
        for E in Es:
            k(f"v_pk_add_f32 {v(E, 2)}, {v(E, 2)}, 1.0 op_sel_hi:[1,0]")
        for E in Es:
            k(f"v_rcp_f32 {v(E)}, {v(E)}")
            k(f"v_rcp_f32 {v(E + 1)}, {v(E + 1)}")
        for T, E in zip(Ts, Es):
            k(f"v_pk_mul_f32 {v(T, 2)}, {v(T, 2)}, {v(E, 2)}")
        for jl, T in enumerate(Ts):
            k(f"v_cvt_pk_bf16_f32 {v(OUT + jl)}, {v(T)}, {v(T + 1)}")
        k(f"v_permlane32_swap_b32 {v(OUT)}, {v(OUT + 2)}")
        k(f"v_permlane32_swap_b32 {v(OUT + 1)}, {v(OUT + 3)}")
        k(f"v_permlane16_swap_b32 {v(OUT)}, {v(OUT + 1)}")
        k(f"v_permlane16_swap_b32 {v(OUT + 2)}, {v(OUT + 3)}")
        k(f"buffer_store_dwordx4 {v(OUT, 4)}, v6, s[20:23], {s(SG + mt)} offen")
    k.stamp()
    k.stamp(real=True)
    k.dump_stamps(4, WS_DIAG)
    k.label(done)
    k("s_endpgm")
    return k


RS2 = 272
G2_RED = 64 * RS2
G2_LDS = 4 * G2_RED


def gen_gemm2(name, ws_xin, ws_xout, ws_st):
    final = ws_xout is None
    k = Kernel(name)
    k.diag = DIAG == name
    done = f"{name}_done"
    k("s_load_dwordx2 s[4:5], s[0:1], 120")
    k("s_load_dwordx2 s[6:7], s[0:1], 104")
    k("s_cmp_ge_u32 s2, 256")
    k(f"s_cbranch_scc1 {done}")
    k.stamp(real=True)
    k.stamp()
    k("v_readfirstlane_b32 s28, v0")
    k("s_lshr_b32 s28, s28, 6")
    k("s_and_b32 s29, s2, 7")
    k("s_lshr_b32 s30, s2, 3")
    k("s_lshl_b32 s29, s29, 2")
    k("s_and_b32 s31, s30, 3")
    k("s_add_u32 s29, s29, s31")
    k("s_lshr_b32 s30, s30, 2")
    SG, SW = 32, 36
    for i in range(4):
        k(f"s_lshl_b32 s31, s29, 2")
        k(f"s_add_u32 s31, s31, {i}")
        k(f"s_mul_i32 {s(SG + i)}, s31, {GLT}")
        k(f"s_lshl_b32 s31, s30, 2")
        k(f"s_add_u32 s31, s31, {i}")
        k(f"s_mul_i32 {s(SW + i)}, s31, {NKS2 * 1024}")
    k("v_and_b32 v3, 63, v0")
    k("v_lshlrev_b32 v1, 4, v3")
    k("s_lshl_b32 s31, s28, 10")
    k("v_add_u32 v24, s31, v1")
    k("s_lshr_b32 s42, s2, 3")
    k("s_and_b32 s42, s42, 3")
    k("s_mul_i32 s42, s42, 3")
    k("s_add_u32 s42, s42, s30")
    k("s_cmp_ge_u32 s42, 11")
    k("s_cselect_b32 s43, 11, 0")
    k("s_sub_u32 s42, s42, s43")
    if "norot" in EXP:
        k("s_mov_b32 s42, 0")
    k("s_lshl_b32 s42, s42, 12")
    k("v_and_b32 v4, 7, v0")
    k("v_lshrrev_b32 v5, 3, v0")
    k("v_lshlrev_b32 v2, 8, v5")
    k("v_lshl_add_u32 v2, v4, 4, v2")
    k("s_lshl_b32 s31, s30, 14")
    k("s_lshr_b32 s40, s29, 1")
    k("s_lshl_b32 s40, s40, 17")
    k("s_add_u32 s31, s31, s40")
    k("s_and_b32 s40, s29, 1")
    k("s_lshl_b32 s40, s40, 7")
    k("s_add_u32 s31, s31, s40")
    k("v_add_u32 v2, s31, v2")
    k("s_mov_b32 s41, 0x2000")
    k("s_waitcnt lgkmcnt(0)")
    k.srd(8, 4, WS_G, G_BYTES)
    k.srd(12, 4, WS_W2, W2_BYTES)
    k.srd(16, 4, ws_xin, XT_BYTES)
    if final:
        k.srd(20, 6, 0, XT_BYTES)
    else:
        k.srd(20, 4, ws_xout, XT_BYTES)
        k.srd(24, 4, ws_st, ST_BYTES)
    ACC, ST0, XR, ET = 32, 96, 8, 16
    NSTG = int(os.environ.get('PF2', '5'))
    vm = Cnt(k, "vmcnt", 62)

    def sreg(it, off):
        return a(it * 32 + off, 4) if it < 8 else v(ST0 + (it - 8) * 32 + off, 4)

    def issue(it):
        if it:
            k("s_add_u32 s42, s42, 0x1000")
            k(f"s_cmp_ge_u32 s42, {11 * 4096}")
            k("s_cselect_b32 s42, 0, s42")
        k("v_add_u32 v1, s42, v24")
        for i in range(4):
            vm.issue(("S", it))
            k(f"buffer_load_dwordx4 {sreg(it, 4 * i)}, v1, s[8:11], {s(SG + i)} offen")
            vm.issue(("S", it))
            k(f"buffer_load_dwordx4 {sreg(it, 16 + 4 * i)}, v1, s[12:15], {s(SW + i)} offen")

    NIT = 11
    for it in range(NSTG):
        issue(it)
    vm.issue(("XR",))
    k(f"buffer_load_dwordx4 {v(XR, 4)}, v2, s[16:19], 0 offen")
    vm.issue(("XR",))
    k(f"buffer_load_dwordx4 {v(XR + 4, 4)}, v2, s[16:19], s41 offen")
    for r in range(64):
        k(f"v_mov_b32 {v(ACC + r)}, 0")
    for it in range(NIT):
        vm.wait(("S", it))
        if it in (0, 1, 3, 6, 9):
            k.stamp()
        for aa in range(4):
            for b in range(4):
                acc = ACC + (aa * 4 + b) * 4
                k(f"v_mfma_f32_16x16x32_bf16 {v(acc, 4)}, {sreg(it, 4 * aa)}, {sreg(it, 16 + 4 * b)}, {v(acc, 4)}")
        if it + NSTG < NIT:
            issue(it + NSTG)
    k.stamp()
    k("v_and_b32 v6, 15, v3")
    k("v_lshrrev_b32 v7, 4, v3")
    k(f"v_mul_u32_u24 v6, {RS2}, v6")
    k("v_lshl_add_u32 v6, v7, 4, v6")
    k(f"s_mul_i32 s31, s28, {G2_RED}")
    k("v_add_u32 v6, s31, v6")
    n = 0
    for aa in range(4):
        for b in range(4):
            acc = ACC + (aa * 4 + b) * 4
            k(f"ds_write_b128 v6, {v(acc, 4)} offset:{b * 16 * RS2 + aa * 64}")
            n += 1
            if n % 8 == 0:
                k("s_waitcnt lgkmcnt(0)")
    k("s_barrier")
    k.stamp()
    k(f"v_mul_u32_u24 v6, {RS2}, v5")
    k("v_lshl_add_u32 v6, v4, 5, v6")
    R = 96
    for dd in range(2):
        for w in range(4):
            for hf in range(2):
                k(f"ds_read_b128 {v(R + dd * 32 + w * 8 + 4 * hf, 4)}, v6 offset:{w * G2_RED + dd * 32 * RS2 + 16 * hf}")
        k("s_waitcnt lgkmcnt(0)")
    vm.drain()
    O = 32
    PK = 48
    XF = 56
    for dd in range(2):
        for j in range(8):
            r0 = R + dd * 32 + j
            k(f"v_add_f32 {v(r0)}, {v(r0)}, {v(r0 + 8)}")
            k(f"v_add_f32 {v(r0 + 16)}, {v(r0 + 16)}, {v(r0 + 24)}")
            k(f"v_add_f32 {v(O + dd * 8 + j)}, {v(r0)}, {v(r0 + 16)}")
        round_pairs(k, [O + dd * 8 + j for j in range(8)], ET)
        for j in range(8):
            unpack(k, XF + j, XR + dd * 4 + j // 2, j & 1)
            k(f"v_add_f32 {v(O + dd * 8 + j)}, {v(O + dd * 8 + j)}, {v(XF + j)}")
        for j in range(4):
            k(f"v_cvt_pk_bf16_f32 {v(PK + dd * 4 + j)}, {v(O + dd * 8 + 2 * j)}, {v(O + dd * 8 + 2 * j + 1)}")
    if not final:
        k(f"buffer_store_dwordx4 {v(PK, 4)}, v2, s[20:23], 0 offen")
        k(f"buffer_store_dwordx4 {v(PK + 4, 4)}, v2, s[20:23], s41 offen")
        SV, QV = 64, 72
        for dd in range(2):
            for j in range(8):
                unpack(k, O + dd * 8 + j, PK + dd * 4 + j // 2, j & 1)
        for j in range(8):
            k(f"v_add_f32 {v(SV + j)}, {v(O + j)}, {v(O + 8 + j)}")
            k(f"v_mul_f32 {v(QV + j)}, {v(O + j)}, {v(O + j)}")
            k(f"v_fmac_f32 {v(QV + j)}, {v(O + 8 + j)}, {v(O + 8 + j)}")
        for base in (SV, QV):
            for j in range(4):
                k(f"v_permlane32_swap_b32 {v(base + j)}, {v(base + j + 4)}")
            for j in range(4):
                k(f"v_add_f32 {v(base + j)}, {v(base + j)}, {v(base + j + 4)}")
        for base in (SV, QV):
            for j in range(2):
                k(f"v_permlane16_swap_b32 {v(base + j)}, {v(base + j + 2)}")
            for j in range(2):
                k(f"v_add_f32 {v(base + j)}, {v(base + j)}, {v(base + j + 2)}")
        for base in (SV, QV):
            for j in range(2):
                k(f"v_add_f32_dpp {v(base + 4 + j)}, {v(base + j)}, {v(base + j)} row_ror:8 row_mask:0xf bank_mask:0xf")
        k("v_and_b32 v6, 8, v3")
        k("v_cmp_eq_u32 vcc, 0, v6")
        k(f"v_cndmask_b32 {v(SV)}, {v(SV + 5)}, {v(SV + 4)}, vcc")
        k(f"v_cndmask_b32 {v(QV)}, {v(QV + 5)}, {v(QV + 4)}, vcc")
        k("v_lshrrev_b32 v6, 3, v3")
        k("v_lshl_add_u32 v6, v4, 3, v6")
        k("v_lshlrev_b32 v6, 3, v6")
        k("s_lshl_b32 s31, s29, 9")
        k(f"buffer_atomic_add_f32 {v(SV)}, v6, s[24:27], s31 offen")
        k(f"buffer_atomic_add_f32 {v(QV)}, v6, s[24:27], s31 offen offset:4")
    else:
        RT = 144
        k("s_barrier")
        k(f"v_mul_u32_u24 v6, {8 * RT}, v4")
        k("v_lshl_add_u32 v6, v5, 1, v6")
        for dd in range(2):
            for j in range(8):
                op = "ds_write_b16_d16_hi" if j & 1 else "ds_write_b16"
                k(f"{op} v6, {v(PK + dd * 4 + j // 2)} offset:{j * RT + dd * 64}")
            k("s_waitcnt lgkmcnt(0)")
        k("s_barrier")
        k(f"v_mul_u32_u24 v6, {RT}, v5")
        k("v_lshl_add_u32 v6, v4, 4, v6")
        k(f"ds_read_b128 {v(O, 4)}, v6")
        k(f"ds_read_b128 {v(O + 4, 4)}, v6 offset:{32 * RT}")
        k("v_lshlrev_b32 v7, 10, v5")
        k("v_lshl_add_u32 v7, v4, 4, v7")
        k("s_lshl_b32 s31, s29, 16")
        k("s_lshl_b32 s40, s30, 7")
        k("s_add_u32 s31, s31, s40")
        k("s_add_u32 s40, s31, 0x8000")
        k("s_waitcnt lgkmcnt(0)")
        k(f"buffer_store_dwordx4 {v(O, 4)}, v7, s[20:23], s31 offen")
        k(f"buffer_store_dwordx4 {v(O + 4, 4)}, v7, s[20:23], s40 offen")
    k.stamp()
    k.stamp(real=True)
    k.dump_stamps(4, WS_DIAG)
    k.label(done)
    k("s_endpgm")
    return k


def extend(kernels, launches):
    kernels.append(gen_gemm1("gemm1a_kernel", WS_X1T))
    launches.append(("gemm1a_kernel", 256, 512, G1_LDS))
    kernels.append(gen_gemm2("gemm2a_kernel", WS_X1T, WS_X2T, WS_ST2))
    launches.append(("gemm2a_kernel", 256, 256, G2_LDS))
    kernels.append(gen_conv("conv2_kernel", WS_X2T, WS_ST2, WS_X3T))
    launches.append(("conv2_kernel", D, 256, CONV_LDS))
    kernels.append(gen_gemm1("gemm1b_kernel", WS_X3T))
    launches.append(("gemm1b_kernel", 256, 512, G1_LDS))
    kernels.append(gen_gemm2("gemm2b_kernel", WS_X3T, None, None))
    launches.append(("gemm2b_kernel", 256, 256, G2_LDS))
```

```python
import struct
import sys

from asmlib import Kernel, a, s, v

L, D, NST, F = 2048, 512, 128, 1376

KR_PART = 4608
KR_CH = 5120
P0 = 2072
WS_KR = 0x0000000
WS_X0T = 0x0500000
WS_X1T = 0x0700000
WS_X2T = 0x0900000
WS_X3T = 0x0B00000
XT_BYTES = D * L * 2
WS_ST0 = 0x0D00000
WS_ST2 = 0x0D10000
ST_BYTES = L * 8
WS_CS = 0x0D20000
NPT = 176
CS_HALF = NPT * 16 * 4
WS_W1 = 0x0E00000
W1_BYTES = (NPT + 1) * 16 * 1024
WS_W2 = 0x1100000
NKS2 = 43
W2_BYTES = 32 * NKS2 * 1024
WS_G = 0x1300000
GKS = 44
G_BYTES = 128 * GKS * 1024
WS_DIAG = 0x1A00000
import os
DIAG = os.environ.get('DIAG', '')


def f32bits(x):
    return struct.unpack("<I", struct.pack("<f", x))[0]


def hx(x):
    return f"0x{f32bits(x):08x}"


LOG2E = 1.4426950408889634
LOG2E_HI = struct.unpack("<f", struct.pack("<f", LOG2E))[0]
LOG2E_LO = LOG2E - LOG2E_HI
LN2 = 0.6931471805599453
INV2PI = 0.15915494309189535
ONES_BF16 = 0x3F803F80


N_KGEN, N_X0, N_W1, N_W2 = 512, 64, 88, 43
PREP_GRID = N_KGEN + N_X0 + N_W1 + N_W2
PREP_LDS = 36864


def row4_sum(k, x, t):
    k(f"v_mov_b32 {v(t)}, {v(x)}")
    k(f"v_permlane16_swap_b32 {v(x)}, {v(t)}")
    k(f"v_add_f32 {v(x)}, {v(x)}, {v(t)}")
    k(f"v_mov_b32 {v(t)}, {v(x)}")
    k(f"v_permlane32_swap_b32 {v(x)}, {v(t)}")
    k(f"v_add_f32 {v(x)}, {v(x)}, {v(t)}")


def gen_prep():
    k = Kernel("prep_kernel")
    k.diag = DIAG == "prep_kernel"
    k("s_load_dwordx16 s[16:31], s[0:1], 0")
    k("s_load_dwordx8 s[32:39], s[0:1], 80")
    k("s_load_dwordx2 s[40:41], s[0:1], 120")
    k(f"s_cmp_ge_u32 s2, {PREP_GRID}")
    k("s_cbranch_scc1 prep_done")
    k.stamp(real=True)
    k.stamp()
    k(f"s_cmp_ge_u32 s2, {N_KGEN}")
    k("s_cbranch_scc1 prep_not_kgen")

    PRM = 8
    ACC = 32
    TA = 44
    TB = 47
    DT = 48
    T = 50
    k("s_lshl_b32 s3, s2, 8")
    k("v_lshrrev_b32 v1, 4, v0")
    k("v_lshl_add_u32 v1, v1, 3, s3")
    k("s_lshr_b32 s4, s2, 1")
    k("s_lshl_b32 s4, s4, 2")
    k("s_waitcnt lgkmcnt(0)")
    k("s_load_dword s5, s[30:31], s4")
    for i in range(6):
        k(f"global_load_dwordx2 {v(PRM + 2 * i, 2)}, v1, {s(18 + 2 * i, 2)}")
    k.srd(8, 40, WS_KR, 512 * KR_CH)
    k("v_and_b32 v2, 15, v0")
    k("v_lshrrev_b32 v3, 3, v2")
    k("v_and_b32 v4, 7, v2")
    k(f"v_lshl_add_u32 {v(TA)}, v3, 7, v4")
    k("v_lshrrev_b32 v5, 2, v2")
    k("v_and_b32 v6, 3, v2")
    k("v_lshlrev_b32 v6, 1, v6")
    k("v_lshl_add_u32 v5, v5, 7, v6")
    k("v_add_u32 v5, 256, v5")
    k("v_lshrrev_b32 v6, 1, v4")
    k("v_and_b32 v7, 1, v2")
    k("v_lshlrev_b32 v7, 2, v7")
    k("v_lshl_add_u32 v6, v6, 7, v7")
    k("v_add_u32 v6, 512, v6")
    k("v_cmp_gt_u32 vcc, 8, v2")
    k(f"v_cndmask_b32 {v(TA + 1)}, v6, v5, vcc")
    k("v_min_u32 v5, 8, v2")
    k("v_lshlrev_b32 v5, 7, v5")
    k(f"v_add_u32 {v(TA + 2)}, 0x400, v5")
    k(f"v_lshlrev_b32 {v(TB)}, 3, v2")
    for r in (TA, TA + 1, TA + 2, TB):
        k(f"v_cvt_f32_u32 {v(r)}, {v(r)}")
    for r in range(12):
        k(f"v_mov_b32 {v(ACC + r)}, 0")
    k("s_waitcnt lgkmcnt(0)")
    k("s_and_b32 s6, s2, 1")
    k("s_lshl_b32 s6, s6, 4")
    k("s_lshr_b32 s5, s5, s6")
    k("s_lshl_b32 s5, s5, 16")
    k(f"v_mov_b32 {v(T)}, s5")
    k(f"v_mul_f32 {v(T + 1)}, {hx(LOG2E_HI)}, {v(T)}")
    k(f"v_mov_b32 {v(T + 2)}, {hx(LOG2E_HI)}")
    k(f"v_fma_f32 {v(T + 2)}, {v(T)}, {v(T + 2)}, -{v(T + 1)}")
    k(f"v_fmac_f32 {v(T + 2)}, {hx(LOG2E_LO)}, {v(T)}")
    k(f"v_exp_f32 {v(T + 3)}, {v(T + 1)}")
    k(f"v_mul_f32 {v(T + 2)}, {hx(LN2)}, {v(T + 2)}")
    k(f"v_fma_f32 {v(T + 3)}, {v(T + 3)}, {v(T + 2)}, {v(T + 3)}")
    k(f"v_cvt_pk_bf16_f32 {v(T + 3)}, {v(T + 3)}, {v(T + 3)}")
    k(f"v_lshlrev_b32 {v(DT)}, 16, {v(T + 3)}")
    k("s_waitcnt vmcnt(0)")
    k.stamp()
    U = T
    A2, B2, CR, CI = T + 6, T + 7, T + 8, T + 9
    W = T + 10
    for j in range(4):
        for i in range(6):
            src = v(PRM + 2 * i + (j >> 1))
            if j & 1:
                k(f"v_and_b32 {v(U + i)}, 0xffff0000, {src}")
            else:
                k(f"v_lshlrev_b32 {v(U + i)}, 16, {src}")
        k(f"v_mul_f32 {v(A2)}, {v(DT)}, {v(U + 0)}")
        k(f"v_mul_f32 {v(B2)}, {v(DT)}, {v(U + 1)}")
        k(f"v_mul_f32 {v(U + 2)}, {v(DT)}, {v(U + 2)}")
        k(f"v_mul_f32 {v(U + 3)}, {v(DT)}, {v(U + 3)}")
        k(f"v_mul_f32 {v(A2)}, {hx(LOG2E)}, {v(A2)}")
        k(f"v_mul_f32 {v(B2)}, {hx(INV2PI)}, {v(B2)}")
        k(f"v_mul_f32 {v(CR)}, {v(U + 4)}, {v(U + 2)}")
        k(f"v_mul_f32 {v(CI)}, {v(U + 4)}, {v(U + 3)}")
        k(f"v_fma_f32 {v(CR)}, -{v(U + 5)}, {v(U + 3)}, {v(CR)}")
        k(f"v_fmac_f32 {v(CI)}, {v(U + 5)}, {v(U + 2)}")
        tt = [TA, TA + 1, TA + 2, TB]
        for x in range(4):
            k(f"v_mul_f32 {v(W + 4 * x)}, {v(A2)}, {v(tt[x])}")
            k(f"v_mul_f32 {v(W + 4 * x + 1)}, {v(B2)}, {v(tt[x])}")
        for x in range(4):
            k(f"v_fract_f32 {v(W + 4 * x + 1)}, {v(W + 4 * x + 1)}")
        for x in range(4):
            k(f"v_exp_f32 {v(W + 4 * x)}, {v(W + 4 * x)}")
            k(f"v_cos_f32 {v(W + 4 * x + 2)}, {v(W + 4 * x + 1)}")
            k(f"v_sin_f32 {v(W + 4 * x + 3)}, {v(W + 4 * x + 1)}")
        for x in range(3):
            k(f"v_mul_f32 {v(W + 4 * x + 2)}, {v(W + 4 * x)}, {v(W + 4 * x + 2)}")
            k(f"v_mul_f32_e64 {v(W + 4 * x + 3)}, -{v(W + 4 * x)}, {v(W + 4 * x + 3)}")
        x = 3
        k(f"v_mul_f32 {v(W + 14)}, {v(W + 12)}, {v(W + 14)}")
        k(f"v_mul_f32 {v(W + 15)}, {v(W + 12)}, {v(W + 15)}")
        k(f"v_mul_f32 {v(W + 12)}, {v(CR)}, {v(W + 14)}")
        k(f"v_mul_f32 {v(W + 13)}, {v(CR)}, {v(W + 15)}")
        k(f"v_fma_f32 {v(W + 12)}, -{v(CI)}, {v(W + 15)}, {v(W + 12)}")
        k(f"v_fmac_f32 {v(W + 13)}, {v(CI)}, {v(W + 14)}")
        for x in range(3):
            k(f"v_mfma_f32_16x16x4_f32 {v(ACC + 4 * x, 4)}, {v(W + 4 * x + 2)}, {v(W + 12)}, {v(ACC + 4 * x, 4)}")
            k(f"v_mfma_f32_16x16x4_f32 {v(ACC + 4 * x, 4)}, {v(W + 4 * x + 3)}, {v(W + 13)}, {v(ACC + 4 * x, 4)}")
    k.stamp()
    k("v_lshrrev_b32 v3, 6, v0")
    k("v_bfe_u32 v4, v0, 4, 2")
    k("v_mul_u32_u24 v3, 3072, v3")
    k("v_lshl_add_u32 v3, v4, 8, v3")
    k("v_lshl_add_u32 v3, v2, 2, v3")
    for Tt in range(3):
        for kk in range(4):
            k(f"ds_write_b32 v3, {v(ACC + 4 * Tt + kk)} offset:{(16 * Tt + kk) * 64}")
    k("s_waitcnt lgkmcnt(0)")
    k("s_barrier")
    FT = 24576
    k("v_lshlrev_b32 v3, 2, v0")
    k("v_min_u32 v4, 255, v0")
    k("v_lshlrev_b32 v4, 2, v4")
    for w in range(8):
        k(f"ds_read_b32 {v(T + w)}, v3 offset:{w * 3072}")
    for w in range(6):
        k(f"ds_read_b32 {v(T + 8 + w)}, v4 offset:{w * 3072 + 2048}")
    k("s_waitcnt lgkmcnt(6)")
    for w in range(6, 8):
        k(f"ds_read_b32 {v(T + 8 + w)}, v4 offset:{w * 3072 + 2048}")
    k("v_mov_b32 v4, 0")
    k(f"v_mov_b32 v5, {FT + 1024 * 4}")
    k("ds_write_b32 v5, v4")
    k("s_waitcnt lgkmcnt(0)")
    for e in range(2):
        b = T + 8 * e
        for w in range(0, 8, 2):
            k(f"v_add_f32 {v(b + w)}, {v(b + w)}, {v(b + w + 1)}")
        k(f"v_add_f32 {v(b)}, {v(b)}, {v(b + 2)}")
        k(f"v_add_f32 {v(b + 4)}, {v(b + 4)}, {v(b + 6)}")
        k(f"v_add_f32 {v(b)}, {v(b)}, {v(b + 4)}")
        k(f"ds_write_b32 v3, {v(b)} offset:{FT + e * 2048}")
    k(f"v_cmp_gt_u32 vcc, {641 - 512}, v0")
    k(f"v_cndmask_b32 {v(T + 8)}, 0, {v(T + 8)}, vcc")
    k(f"v_max_f32_e64 {v(T + 1)}, abs({v(T)}), abs({v(T + 8)})")
    for mod in ("row_shr:1", "row_shr:2", "row_shr:4", "row_shr:8"):
        k(f"v_max_f32_dpp {v(T + 1)}, {v(T + 1)}, {v(T + 1)} {mod} row_mask:0xf bank_mask:0xf bound_ctrl:0")
    k(f"v_max_f32_dpp {v(T + 1)}, {v(T + 1)}, {v(T + 1)} row_bcast:15 row_mask:0xa bank_mask:0xf")
    k(f"v_max_f32_dpp {v(T + 1)}, {v(T + 1)}, {v(T + 1)} row_bcast:31 row_mask:0xc bank_mask:0xf")
    MXO = FT + 1028 * 4
    k("v_lshrrev_b32 v4, 6, v0")
    k("v_lshlrev_b32 v4, 2, v4")
    k("v_and_b32 v5, 63, v0")
    k("v_cmp_eq_u32 vcc, 63, v5")
    k("s_and_saveexec_b64 s[12:13], vcc")
    k(f"ds_write_b32 v4, {v(T + 1)} offset:{MXO}")
    k("s_mov_b64 exec, s[12:13]")
    k("s_waitcnt lgkmcnt(0)")
    k("s_barrier")
    k("v_mov_b32 v4, 0")
    k(f"ds_read_b128 {v(T + 2, 4)}, v4 offset:{MXO}")
    k(f"ds_read_b128 {v(T + 6, 4)}, v4 offset:{MXO + 16}")
    k("s_waitcnt lgkmcnt(0)")
    k(f"v_max3_f32 {v(T)}, {v(T + 2)}, {v(T + 3)}, {v(T + 4)}")
    k(f"v_max3_f32 {v(T)}, {v(T)}, {v(T + 5)}, {v(T + 6)}")
    k(f"v_max3_f32 {v(T)}, {v(T)}, {v(T + 7)}, {v(T + 8)}")
    k(f"v_max_f32 {v(T)}, {v(T)}, {v(T + 9)}")
    k(f"v_frexp_exp_i32_f32 {v(T)}, {v(T)}")
    ESC = 48
    k(f"v_sub_u32 {v(ESC)}, 15, {v(T)}")
    k(f"v_sub_u32 {v(T + 1)}, 0, {v(ESC)}")
    k(f"v_ldexp_f32 {v(T + 1)}, 1.0, {v(T + 1)}")
    k(f"s_mul_i32 s4, s2, {KR_CH}")
    k(f"v_mov_b32 v4, {KR_PART}")
    k("v_cmp_eq_u32 vcc, 0, v0")
    k("s_and_saveexec_b64 s[12:13], vcc")
    k(f"buffer_store_dword {v(T + 1)}, v4, s[8:11], s4 offen")
    k("s_mov_b64 exec, s[12:13]")

    k.stamp()

    def expand(chunk_add):
        LG = 8
        TT = 16
        IX = 24
        X1, X2, X3 = 32, 33, 34
        k("v_lshlrev_b32 v3, 3, v0")
        for jj in range(8):
            k(f"v_sub_u32 {v(LG + jj)}, {P0 - 8 * chunk_add - jj}, v3")
            k(f"v_cvt_f32_u32 {v(TT + jj)}, {v(LG + jj)}")
        for jj in range(0, 8, 2):
            k(f"v_cvt_pk_bf16_f32 {v(X1)}, {v(TT + jj)}, {v(TT + jj + 1)}")
            k(f"v_lshlrev_b32 {v(TT + jj)}, 16, {v(X1)}")
            k(f"v_and_b32 {v(TT + jj + 1)}, 0xffff0000, {v(X1)}")
        for jj in range(8):
            t = v(TT + jj)
            k(f"v_cvt_u32_f32 {t}, {t}")
            k(f"v_or_b32 {v(X1)}, 1, {t}")
            k(f"v_ffbh_u32 {v(X1)}, {v(X1)}")
            k(f"v_sub_u32 {v(X1)}, 24, {v(X1)}")
            k(f"v_med3_i32 {v(X1)}, {v(X1)}, 0, 3")
            k(f"v_lshrrev_b32 {v(X2)}, 7, {t}")
            k(f"v_sub_u32 {v(X3)}, 3, {v(X1)}")
            k(f"v_lshlrev_b32 {v(X2)}, {v(X3)}, {v(X2)}")
            k(f"v_and_b32 {v(X3)}, 7, {t}")
            k(f"v_lshrrev_b32 {v(X3)}, {v(X1)}, {v(X3)}")
            k(f"v_lshl_add_u32 {v(X2)}, {v(X1)}, 3, {v(X2)}")
            k(f"v_add_u32 {v(X2)}, {v(X2)}, {v(X3)}")
            k(f"v_bfe_u32 {v(X3)}, {t}, 3, 4")
            k(f"v_lshl_add_u32 {v(X2)}, {v(X2)}, 4, {v(X3)}")
            k(f"v_cmp_gt_u32 vcc, 0x800, {v(LG + jj)}")
            k(f"v_mov_b32 {v(X3)}, 0x400")
            k(f"v_cndmask_b32 {v(X2)}, {v(X3)}, {v(X2)}, vcc")
            k(f"v_lshlrev_b32 {v(IX + jj)}, 2, {v(X2)}")
            k(f"ds_read_b32 {v(TT + jj)}, {v(IX + jj)} offset:{FT}")
        k("s_waitcnt lgkmcnt(0)")
        HI = 36
        for jj in range(8):
            k(f"v_ldexp_f32 {v(TT + jj)}, {v(TT + jj)}, {v(ESC)}")
        for jj in range(0, 8, 2):
            k(f"v_cvt_pk_f16_f32 {v(HI + jj // 2)}, {v(TT + jj)}, {v(TT + jj + 1)}")
        k("v_lshlrev_b32 v3, 4, v0")
        if chunk_add:
            k(f"v_add_u32 v3, {chunk_add * 16}, v3")
        k(f"buffer_store_dwordx4 {v(HI, 4)}, v3, s[8:11], s4 offen")

    k("v_cmp_gt_u32 vcc, 288, v0")
    k("s_and_saveexec_b64 s[12:13], vcc")
    if not k.diag:
        k("s_cbranch_execz prep_done")
    k.fence(4)
    expand(0)
    k.stamp()
    k.stamp(real=True)
    k.dump_stamps(40, WS_DIAG)
    k("s_mov_b64 exec, -1")
    ns_k = getattr(k, "nstamp", 0)
    k("s_endpgm")

    k.label("prep_not_kgen")
    k.fence(2)
    k("v_readfirstlane_b32 s3, v0")
    k("s_cmp_ge_u32 s3, 256")
    k("s_cbranch_scc1 prep_done")
    k("s_setprio 3")
    k(f"s_cmp_ge_u32 s2, {N_KGEN + N_X0}")
    k("s_cbranch_scc1 prep_not_x0")

    RS = 1056

    def transpose32(is_x0):
        src = 16 if is_x0 else 36
        DAT = 8
        k("v_lshlrev_b32 v1, 4, v0")
        k("v_add_u32 v1, s4, v1")
        for j in range(8):
            if j:
                k(f"v_add_u32 v1, 0x1000, v1")
            k(f"global_load_dwordx4 {v(DAT + 4 * j, 4)}, v1, {s(src, 2)}")
        k("v_lshrrev_b32 v2, 6, v0")
        k("v_and_b32 v3, 63, v0")
        k(f"v_mul_u32_u24 v4, {RS}, v2")
        k("v_lshl_add_u32 v4, v3, 4, v4")
        if is_x0:
            SS = 40
            k(f"s_mov_b32 s7, 0x{ONES_BF16:08x}")
        for j in range(8):
            k(f"s_waitcnt vmcnt({7 - j})")
            k(f"ds_write_b128 v4, {v(DAT + 4 * j, 4)} offset:{4 * j * RS}")
            if is_x0:
                k(f"v_mov_b32 {v(SS + 2 * j)}, 0")
                k(f"v_mov_b32 {v(SS + 2 * j + 1)}, 0")
                for q in range(4):
                    k(f"v_dot2_f32_bf16 {v(SS + 2 * j)}, {v(DAT + 4 * j + q)}, s7, {v(SS + 2 * j)}")
                    k(f"v_dot2_f32_bf16 {v(SS + 2 * j + 1)}, {v(DAT + 4 * j + q)}, {v(DAT + 4 * j + q)}, {v(SS + 2 * j + 1)}")
        if is_x0:
            for mod in ("row_shr:1", "row_shr:2", "row_shr:4", "row_shr:8"):
                for r in range(16):
                    k(f"v_add_f32_dpp {v(SS + r)}, {v(SS + r)}, {v(SS + r)} {mod} row_mask:0xf bank_mask:0xf bound_ctrl:0")
            for r in range(16):
                k(f"v_add_f32_dpp {v(SS + r)}, {v(SS + r)}, {v(SS + r)} row_bcast:15 row_mask:0xa bank_mask:0xf")
            for r in range(16):
                k(f"v_add_f32_dpp {v(SS + r)}, {v(SS + r)}, {v(SS + r)} row_bcast:31 row_mask:0xc bank_mask:0xf")
            k("v_lshlrev_b32 v5, 3, v2")
            k("v_add_u32 v5, s5, v5")
            k("v_cmp_eq_u32 vcc, 63, v3")
            k("s_and_saveexec_b64 s[14:15], vcc")
            for j in range(8):
                k(f"buffer_store_dwordx2 {v(SS + 2 * j, 2)}, v5, s[44:47], 0 offen offset:{32 * j}")
            k("s_mov_b64 exec, s[14:15]")
            k("v_mov_b32 v56, 0")
            k("v_mov_b32 v57, 0")
            k("v_mov_b32 v58, 0")
            k("v_mov_b32 v59, 0")
            k("v_lshlrev_b32 v5, 4, v0")
            k("v_add_u32 v5, s5, v5")
            k("v_cmp_gt_u32 vcc, 16, v0")
            k("s_and_saveexec_b64 s[14:15], vcc")
            k("buffer_store_dwordx4 v[56:59], v5, s[48:51], 0 offen")
            k("s_mov_b64 exec, s[14:15]")
        k("s_waitcnt lgkmcnt(0)")
        k("s_barrier")
        k("v_and_b32 v5, 15, v0")
        k("v_bfe_u32 v6, v0, 4, 2")
        k("v_lshrrev_b32 v7, 2, v5")
        k("v_lshl_add_u32 v7, v6, 3, v7")
        k(f"v_mul_u32_u24 v7, {RS}, v7")
        k("v_and_b32 v4, 3, v0")
        k("v_lshl_add_u32 v7, v4, 3, v7")
        k("v_lshl_add_u32 v7, v2, 8, v7")
        for it in range(8):
            k(f"ds_read_b64_tr_b16 {v(DAT + 4 * it, 2)}, v7 offset:{32 * it}")
            k(f"ds_read_b64_tr_b16 {v(DAT + 4 * it + 2, 2)}, v7 offset:{32 * it + 4 * RS}")
        if is_x0:
            k("v_lshl_add_u32 v4, v2, 7, v5")
            k("v_lshlrev_b32 v4, 8, v4")
            k("v_lshl_add_u32 v4, v6, 4, v4")
            k("v_add_u32 v4, s6, v4")
            step = 16 * 256
        else:
            k(f"v_mul_u32_u24 v4, {8 * NKS2 * 1024}, v2")
            k("v_lshl_add_u32 v4, v3, 4, v4")
            k("v_add_u32 v4, s6, v4")
            step = NKS2 * 1024
        for it in range(8):
            k(f"s_waitcnt lgkmcnt({14 - 2 * it})")
            k(f"buffer_store_dwordx4 {v(DAT + 4 * it, 4)}, v4, s[8:11], 0 offen")
            if it < 7:
                k(f"v_add_u32 v4, {step}, v4")
        if k.diag:
            k.nstamp = 2
            for _ in range(4):
                k.stamp()
            k.stamp(real=True)
            k.dump_stamps(40, WS_DIAG)
        k("s_endpgm")

    k("s_waitcnt lgkmcnt(0)")
    k(f"s_sub_u32 s3, s2, {N_KGEN}")
    k("s_lshl_b32 s4, s3, 15")
    k("s_lshl_b32 s5, s3, 8")
    k("s_lshr_b32 s6, s3, 2")
    k("s_lshl_b32 s6, s6, 17")
    k("s_and_b32 s7, s3, 3")
    k("s_lshl_b32 s7, s7, 6")
    k("s_add_u32 s6, s6, s7")
    k.srd(8, 40, WS_X0T, XT_BYTES)
    k.srd(44, 40, WS_ST0, ST_BYTES)
    k.srd(48, 40, WS_ST2, ST_BYTES)
    transpose32(True)

    k.label("prep_not_x0")
    k.fence(2)
    k(f"s_cmp_ge_u32 s2, {N_KGEN + N_X0 + N_W1}")
    k("s_cbranch_scc1 prep_w2")

    k("s_waitcnt lgkmcnt(0)")
    k(f"s_sub_u32 s3, s2, {N_KGEN + N_X0}")
    k("s_lshr_b32 s4, s3, 1")
    k("s_and_b32 s5, s3, 1")
    wbytes = D * F * 2
    k("s_cmp_ge_u32 s4, 43")
    k(f"s_cselect_b32 s6, 0, {wbytes}")
    k.srd(8, 32, 0, 0)
    k("s_mov_b32 s10, s6")
    k.srd(12, 34, 0, 0)
    k("s_mov_b32 s14, s6")
    k.srd(44, 40, WS_W1, W1_BYTES)
    k.srd(48, 40, WS_CS, 2 * CS_HALF)
    RS1 = 144
    k("s_cmp_lg_u32 s4, 43")
    k("s_cbranch_scc1 prep_w1_noones")
    for q in range(4):
        k(f"v_mov_b32 {v(8 + q)}, 0x{ONES_BF16:08x}")
    k("v_lshlrev_b32 v1, 4, v0")
    k("s_lshl_b32 s6, s5, 13")
    k(f"s_add_u32 s6, s6, {NPT * 16384}")
    k("buffer_store_dwordx4 v[8:11], v1, s[44:47], s6 offen")
    k("s_add_u32 s6, s6, 4096")
    k("buffer_store_dwordx4 v[8:11], v1, s[44:47], s6 offen")
    k("s_waitcnt vmcnt(0)")
    k.label("prep_w1_noones")
    k.fence(2)
    k(f"s_mul_i32 s6, s5, {256 * F * 2}")
    k("s_lshl_b32 s7, s4, 6")
    k("s_add_u32 s6, s6, s7")
    k("v_lshrrev_b32 v2, 2, v0")
    k("v_and_b32 v3, 3, v0")
    k(f"v_mul_u32_u24 v1, {F * 2}, v2")
    k("v_lshl_add_u32 v1, v3, 4, v1")
    GA, UA, TI = 8, 24, 40
    for j in range(4):
        if j:
            k(f"s_add_u32 s6, s6, {64 * F * 2}")
        k(f"buffer_load_dwordx4 {v(GA + 4 * j, 4)}, v1, s[8:11], s6 offen")
        k(f"buffer_load_dwordx4 {v(UA + 4 * j, 4)}, v1, s[12:15], s6 offen")
    k(f"v_mul_u32_u24 v4, {RS1}, v2")
    k("v_lshl_add_u32 v4, v3, 5, v4")
    for j in range(4):
        k(f"s_waitcnt vmcnt({6 - 2 * j})")
        for q in range(4):
            k(f"v_mov_b32 {v(TI + 8 * (j & 1) + 2 * q)}, {v(GA + 4 * j + q)}")
            k(f"v_mov_b32 {v(TI + 8 * (j & 1) + 2 * q + 1)}, {v(UA + 4 * j + q)}")
        k(f"ds_write_b128 v4, {v(TI + 8 * (j & 1), 4)} offset:{64 * j * RS1}")
        k(f"ds_write_b128 v4, {v(TI + 8 * (j & 1) + 4, 4)} offset:{64 * j * RS1 + 16}")
    k("s_waitcnt lgkmcnt(0)")
    k("s_barrier")
    k("v_lshrrev_b32 v2, 6, v0")
    k("v_and_b32 v5, 15, v0")
    k("v_bfe_u32 v6, v0, 4, 2")
    k("v_lshrrev_b32 v7, 2, v5")
    k("v_lshl_add_u32 v7, v6, 3, v7")
    k(f"v_mul_u32_u24 v7, {RS1}, v7")
    k("v_lshl_add_u32 v7, v3, 3, v7")
    k("v_lshl_add_u32 v7, v2, 5, v7")
    for ks in range(8):
        k(f"ds_read_b64_tr_b16 {v(GA + 4 * ks, 2)}, v7 offset:{32 * ks * RS1}")
        k(f"ds_read_b64_tr_b16 {v(GA + 4 * ks + 2, 2)}, v7 offset:{32 * ks * RS1 + 4 * RS1}")
    k("s_lshl_b32 s6, s4, 16")
    k("s_lshl_b32 s7, s5, 13")
    k("s_add_u32 s6, s6, s7")
    k("v_and_b32 v3, 63, v0")
    k("v_lshlrev_b32 v4, 14, v2")
    k("v_lshl_add_u32 v4, v3, 4, v4")
    k("v_add_u32 v1, 0x1000, v4")
    k(f"s_mov_b32 s7, 0x{ONES_BF16:08x}")
    k(f"v_mov_b32 {v(TI)}, 0")
    for ks in range(8):
        k(f"s_waitcnt lgkmcnt({14 - 2 * ks})")
        base = "v4" if ks < 4 else "v1"
        k(f"buffer_store_dwordx4 {v(GA + 4 * ks, 4)}, {base}, s[44:47], s6 offen offset:{(ks & 3) * 1024}")
        for q in range(4):
            k(f"v_dot2_f32_bf16 {v(TI)}, {v(GA + 4 * ks + q)}, s7, {v(TI)}")
    row4_sum(k, TI, TI + 1)
    k(f"s_mul_i32 s6, s5, {CS_HALF}")
    k("s_lshl_b32 s7, s4, 8")
    k("s_add_u32 s6, s6, s7")
    k("v_lshlrev_b32 v4, 6, v2")
    k("v_lshl_add_u32 v4, v5, 2, v4")
    k("v_cmp_gt_u32 vcc, 16, v3")
    k("s_and_saveexec_b64 s[14:15], vcc")
    k(f"buffer_store_dword {v(TI)}, v4, s[48:51], s6 offen")
    if k.diag:
        k.nstamp = 2
        for _ in range(4):
            k.stamp()
        k.stamp(real=True)
        k.dump_stamps(40, WS_DIAG)
    k("s_endpgm")

    k.label("prep_w2")
    k.fence(2)
    k("s_waitcnt lgkmcnt(0)")
    k(f"s_sub_u32 s3, s2, {N_KGEN + N_X0 + N_W1}")
    k("s_lshl_b32 s4, s3, 15")
    k("s_lshl_b32 s6, s3, 10")
    k.srd(8, 40, WS_W2, W2_BYTES)
    transpose32(False)

    k.label("prep_done")
    k("s_endpgm")
    return k


def build(kernels, launches, path):
    hdr = open("interleave_layers__ssm_conv_s4__swiglu_ffn__prompt.s.ref").read().split("\n")
    out = []
    for line in hdr:
        if line.startswith("; Override") or line.startswith("; grid=") or "@launch" in line:
            continue
        if not line.startswith(";"):
            break
        out.append(line)
    for (name, grid, block, lds) in launches:
        out.append(f"; @launch kernel={name} grid=({grid},1,1) block=({block},1,1) lds={lds}")
    out.append('.amdgcn_target "amdgcn-amd-amdhsa--gfx950"')
    out.append(".text")
    for k in kernels:
        out.append(k.text())
    out.append('.section .rodata,"a"')
    for k in kernels:
        out.append(".p2align 6")
        out.append(k.descriptor())
    open(path, "w").write("\n".join(out))


if __name__ == "__main__":
    kernels = [gen_prep()]
    launches = [("prep_kernel", PREP_GRID, 512, PREP_LDS)]
    try:
        import gen2
        gen2.extend(kernels, launches)
    except ImportError:
        pass
    path = sys.argv[1] if len(sys.argv) > 1 else "interleave_layers__ssm_conv_s4__swiglu_ffn__prompt.s"
    build(kernels, launches, path)
    for k in kernels:
        print(k.name, "vgpr", k.maxv + 1, "agpr", k.maxa + 1, "sgpr", k.maxs + 1, "lines", len(k.lines))
```

```python
import re

import os
STFLAGS = os.environ.get("STFLAGS", "sc1")
TRANS = ("v_exp_f32", "v_log_f32", "v_rcp_f32", "v_rsq_f32", "v_sqrt_f32", "v_sin_f32", "v_cos_f32",
         "v_rcp_iflag_f32")

REG_RE = re.compile(r"^(-|abs\(|-abs\(|\|)?([vas])(\d+|\[(\d+):(\d+)\])\)?\|?$")


def parse_reg(tok):
    tok = tok.strip()
    if tok in ("vcc", "vcc_lo", "vcc_hi"):
        return ("s", [106, 107])
    if tok in ("exec", "exec_lo", "exec_hi"):
        return ("s", [126, 127])
    if tok == "m0":
        return ("s", [124])
    m = REG_RE.match(tok)
    if not m:
        return None
    kind = m.group(2)
    if m.group(4) is not None:
        lo, hi = int(m.group(4)), int(m.group(5))
        return (kind, list(range(lo, hi + 1)))
    return (kind, [int(m.group(3))])


def v(i, n=1):
    return f"v{i}" if n == 1 else f"v[{i}:{i + n - 1}]"


def a(i, n=1):
    return f"a{i}" if n == 1 else f"a[{i}:{i + n - 1}]"


def s(i, n=1):
    return f"s{i}" if n == 1 else f"s[{i}:{i + n - 1}]"


def mfma_passes(op):
    if "32x32x16" in op or "32x32x8" in op or "32x32x32" in op:
        return ("xdl", 8)
    if "16x16x32" in op or "16x16x16" in op or "16x16x64" in op:
        return ("xdl", 4)
    if op == "v_mfma_f32_16x16x4_f32":
        return ("sgemm", 8)
    if op == "v_mfma_f32_32x32x2_f32":
        return ("sgemm", 16)
    raise ValueError(op)


class Inst:
    __slots__ = ("pos", "cls", "op", "wv", "rv", "ws", "rs", "mf", "srcc", "stdata", "dpp")


class Kernel:
    def __init__(self, name):
        self.name = name
        self.lines = []
        self.hist = []
        self.pos = 0
        self.maxv = 0
        self.maxa = -1
        self.maxs = 0
        self.nlabel = 0

    def raw(self, text):
        self.lines.append(text)

    def comment(self, text):
        self.lines.append(f"    ; {text}")

    def label(self, name):
        self.lines.append(f"{name}:")

    def newlabel(self, stem="L"):
        self.nlabel += 1
        return f"{self.name}_{stem}{self.nlabel}"

    def fence(self, n=16):
        self.nop(n)

    def nop(self, n):
        while n > 0:
            c = min(n, 16)
            self.lines.append(f"    s_nop {c - 1}")
            self.pos += c
            n -= c

    def _parse(self, text):
        t = text.split(";")[0].strip()
        sp = t.split(None, 1)
        op = sp[0]
        rest = sp[1] if len(sp) > 1 else ""
        ops = []
        depth = 0
        cur = ""
        for ch in rest:
            if ch == "[":
                depth += 1
            if ch == "]":
                depth -= 1
            if ch == "," and depth == 0:
                ops.append(cur.strip())
                cur = ""
            else:
                cur += ch
        if cur.strip():
            ops.append(cur.strip())
        mods = []
        if ops:
            parts = ops[-1].split()
            ops[-1] = parts[0]
            mods = parts[1:]
        return op, ops, mods

    def __call__(self, text):
        if STFLAGS and text.startswith("buffer_store") and "s[96:99]" not in text:
            text = text + " " + STFLAGS
        op, ops, mods = self._parse(text)
        I = Inst()
        I.op = op
        I.wv, I.rv, I.ws, I.rs = set(), set(), set(), set()
        I.mf = None
        I.srcc = set()
        I.stdata = set()
        I.dpp = any(m.startswith(("row_", "quad_perm", "wave_")) for m in mods) or op.endswith("_dpp")
        regs = [parse_reg(o) for o in ops]

        def key(r):
            return [(i + 1000) if r[0] == "a" else i for i in r[1]]

        def add_read(r):
            if r is None:
                return
            if r[0] == "s":
                I.rs.update(r[1])
            else:
                I.rv.update(key(r))

        def add_write(r):
            if r is None:
                return
            if r[0] == "s":
                I.ws.update(r[1])
            else:
                I.wv.update(key(r))

        for r in regs:
            if r is None:
                continue
            if r[0] == "v":
                self.maxv = max(self.maxv, max(r[1]))
            elif r[0] == "a":
                self.maxa = max(self.maxa, max(r[1]))
            elif r[0] == "s" and max(r[1]) < 102:
                self.maxs = max(self.maxs, max(r[1]))

        base = op.replace("_e32", "").replace("_e64", "").replace("_dpp", "")
        if op.startswith("v_mfma"):
            I.cls = "mfma"
            I.mf = mfma_passes(op)
            add_write(regs[0])
            for r in regs[1:]:
                add_read(r)
            if regs[3] is not None:
                I.srcc = set(key(regs[3]))
        elif op.startswith("v_"):
            I.cls = "trans" if base in TRANS else "valu"
            if base.startswith("v_permlane") and "swap" in base:
                for r in regs[:2]:
                    add_read(r)
                    add_write(r)
            elif base.startswith("v_cmp"):
                add_write(regs[0])
                for r in regs[1:]:
                    add_read(r)
            elif base in ("v_add_co_u32", "v_sub_co_u32", "v_addc_co_u32", "v_subb_co_u32"):
                add_write(regs[0])
                add_write(regs[1])
                for r in regs[2:]:
                    add_read(r)
            else:
                add_write(regs[0])
                for r in regs[1:]:
                    add_read(r)
                if base in ("v_fmac_f32", "v_dot2c_f32_bf16", "v_pk_fmac_f16") or I.dpp or "sdwa" in op:
                    add_read(regs[0])
                if base == "v_cndmask_b32" and len(ops) == 3:
                    I.rs.update([106, 107])
        elif op.startswith(("buffer_", "global_", "flat_")):
            I.cls = "vmem"
            is_lds = "lds" in mods or "_lds_" in op
            if "load" in op and not is_lds:
                add_write(regs[0])
                for r in regs[1:]:
                    add_read(r)
                if "d16" in op:
                    add_read(regs[0])
            elif is_lds:
                for r in regs:
                    add_read(r)
                I.rs.add(124)
            else:
                for r in regs:
                    add_read(r)
                if op.startswith("buffer_"):
                    d = regs[0]
                else:
                    d = regs[1]
                if d is not None and len(d[1]) >= 3:
                    I.stdata = set(key(d))
        elif op.startswith("ds_"):
            I.cls = "ds"
            if op.startswith(("ds_read", "ds_bpermute", "ds_permute", "ds_swizzle")):
                add_write(regs[0])
                for r in regs[1:]:
                    add_read(r)
            else:
                for r in regs:
                    add_read(r)
        elif op.startswith("s_"):
            I.cls = "salu"
            if op.startswith(("s_cmp", "s_cbranch", "s_branch", "s_waitcnt", "s_barrier", "s_nop", "s_endpgm",
                              "s_setprio", "s_sleep")):
                for r in regs:
                    add_read(r)
            elif op.startswith(("s_load", "s_memtime", "s_memrealtime", "s_getpc")):
                add_write(regs[0])
                for r in regs[1:]:
                    add_read(r)
            else:
                add_write(regs[0])
                for r in regs[1:]:
                    add_read(r)
                if "saveexec" in op:
                    I.ws.update([126, 127])
        else:
            raise ValueError("unknown op " + op)

        need = self._required(I)
        if need > 0:
            self.nop(need)
        I.pos = self.pos
        if op == "s_nop":
            self.pos += int(ops[0]) + 1
        else:
            self.pos += 1
        self.hist.append(I)
        if len(self.hist) > 40:
            self.hist.pop(0)
        self.lines.append("    " + text)

    def _required(self, I):
        need = 0
        isvalu = I.cls in ("valu", "trans")
        base = I.op.replace("_e32", "").replace("_e64", "").replace("_dpp", "")
        for P in self.hist:
            dist = self.pos - P.pos - 1
            req = 0
            pvalu = P.cls in ("valu", "trans")
            if pvalu:
                if I.cls == "mfma" and (P.wv & I.rv):
                    req = max(req, 2)
                if I.dpp and (P.wv & I.rv):
                    req = max(req, 2)
                if base.startswith("v_permlane") and (P.wv & I.rv):
                    req = max(req, 2)
                if base in ("v_readfirstlane_b32", "v_readlane_b32") and (P.wv & I.rv):
                    req = max(req, 1)
                if P.cls == "trans" and I.cls in ("valu", "mfma") and (P.wv & I.rv):
                    req = max(req, 1)
                if P.cls == "trans" and I.cls in ("vmem", "ds") and (P.wv & I.rv):
                    req = max(req, 1)
                if P.ws:
                    if isvalu and (P.ws & I.rs):
                        req = max(req, 2)
                    if base in ("v_readlane_b32", "v_writelane_b32") and (P.ws & I.rs):
                        req = max(req, 4)
                    if I.cls == "vmem" and (P.ws & I.rs):
                        req = max(req, 5)
                    if I.cls == "salu" and (P.ws & I.rs):
                        req = max(req, 1)
                    if (P.ws & {126, 127}):
                        if I.dpp:
                            req = max(req, 5)
                        if I.cls == "mfma":
                            req = max(req, 4)
            if P.cls == "salu" and 124 in P.ws and 124 in I.rs and I.cls in ("vmem", "ds"):
                req = max(req, 1)
            if P.cls == "salu" and (P.ws & {126, 127}) and (I.dpp or base.startswith("v_permlane")):
                req = max(req, 1)
            if P.stdata and (P.stdata & I.wv):
                req = max(req, 2 if isvalu else 1)
            if P.cls == "mfma":
                kind, passes = P.mf
                idx = {2: 0, 4: 1, 8: 2, 16: 3}[passes]
                D = P.wv
                if I.cls == "mfma":
                    ikind, ipasses = I.mf
                    ab = I.rv - I.srcc if I.srcc else I.rv
                    if D & ab:
                        req = max(req, (5, 8, 12, 20)[idx] if kind == "xdl" else (4, 6, 10, 18)[idx])
                    if D & I.srcc:
                        if D == I.srcc and kind == ikind and passes == ipasses:
                            req = max(req, 2 if passes == 2 else 0)
                        else:
                            if kind == "xdl":
                                req = max(req, (4, 6, 10, 18)[idx])
                            else:
                                req = max(req, 0 if ikind == "xdl" else (2, 4, 8, 16)[idx])
                    elif D & I.wv:
                        req = max(req, (5, 8, 12, 20)[idx] if kind == "xdl" else (4, 6, 10, 18)[idx])
                else:
                    if (D & I.rv) or (D & I.wv):
                        req = max(req, (5, 8, 12, 20)[idx] if kind == "xdl" else (4, 6, 10, 18)[idx])
                    if kind == "xdl" and isvalu and (P.srcc & I.wv):
                        req = max(req, (1, 3, 7, 15)[idx])
            if req > dist:
                need = max(need, req - dist)
        return need

    def text(self):
        stubs = getattr(self, "stubs", None)
        if not stubs:
            out = [f".globl {self.name}", ".p2align 8", f".type {self.name},@function", f"{self.name}:"]
            out += self.lines
            out.append(f"{self.name}_end:")
            return "\n".join(out) + "\n"
        out = []
        for i, (nm, lines) in enumerate(stubs):
            out += [f".globl {nm}", ".p2align 8", f".type {nm},@function", f"{nm}:"]
            out += ["    " + x for x in lines]
            if i + 1 < len(stubs):
                out.append(f"    s_branch {self.name}_body")
        out.append(f"{self.name}_body:")
        out += self.lines
        out.append(f"{self.name}_end:")
        return "\n".join(out) + "\n"

    def descriptors(self):
        stubs = getattr(self, "stubs", None)
        if not stubs:
            return [self.descriptor()]
        return [self.descriptor().replace(f".amdhsa_kernel {self.name}", f".amdhsa_kernel {nm}") for nm, _ in stubs]

    def descriptor(self, vgpr=None, sgpr=None):
        nv = self.maxv + 1
        acc = (nv + 3) // 4 * 4
        tot = acc + (self.maxa + 1) if self.maxa >= 0 else nv
        if vgpr is not None:
            tot = max(tot, vgpr)
        ns = max(self.maxs + 1, 16) if sgpr is None else sgpr
        return f""".amdhsa_kernel {self.name}
  .amdhsa_next_free_vgpr {tot}
  .amdhsa_next_free_sgpr {ns}
  .amdhsa_accum_offset {acc}
  .amdhsa_group_segment_fixed_size 0
  .amdhsa_kernarg_size 128
  .amdhsa_user_sgpr_count 2
  .amdhsa_user_sgpr_kernarg_segment_ptr 1
  .amdhsa_system_sgpr_workgroup_id_x 1
.end_amdhsa_kernel
"""

    STAMP0 = 70

    def stamp(self, *cnts, real=False):
        if not getattr(self, "diag", False):
            return
        n = getattr(self, "nstamp", 0)
        assert n < 13, n
        self.nstamp = n + 1
        r = self.STAMP0 + 2 * n
        self(f"{'s_memrealtime' if real else 's_memtime'} {s(r, 2)}")
        self("s_waitcnt lgkmcnt(0)")
        for c in cnts:
            c.q = []

    def dump_stamps(self, ws_lo, off):
        if not getattr(self, "diag", False):
            return
        n = self.nstamp
        self("s_mov_b64 exec, -1")
        self.srd(96, ws_lo, off, 0x400000)
        self("v_lshrrev_b32 v1, 6, v0")
        self("v_lshlrev_b32 v1, 8, v1")
        self("s_lshl_b32 s100, s2, 12")
        self("v_cmp_eq_u32 vcc, 0, v2" if False else "v_and_b32 v2, 63, v0")
        self("v_cmp_eq_u32 vcc, 0, v2")
        self("s_and_saveexec_b64 s[58:59], vcc")
        for i in range(n):
            self(f"v_mov_b32 v2, {s(self.STAMP0 + 2 * i)}")
            self(f"v_mov_b32 v3, {s(self.STAMP0 + 2 * i + 1)}")
            self(f"buffer_store_dwordx2 v[2:3], v1, s[96:99], s100 offen offset:{8 * i}")
            self.nop(2)

    def tl_start(self):
        if getattr(self, "tl", False):
            self("s_memrealtime s[52:53]")

    def tl_end(self, ws_lo, off):
        if not getattr(self, "tl", False):
            return
        self("s_waitcnt vmcnt(0) lgkmcnt(0)")
        self("s_memrealtime s[54:55]")
        self("s_waitcnt lgkmcnt(0)")
        self("s_mov_b64 exec, -1")
        self.srd(96, ws_lo, off, 0x400000)
        self("s_lshl_b32 s100, s57, 10")
        self("s_add_u32 s100, s100, s2")
        self("s_lshl_b32 s100, s100, 4")
        self("v_mov_b32 v1, 0")
        self("v_cmp_eq_u32 vcc, 0, v0")
        self("s_and_saveexec_b64 s[58:59], vcc")
        for i in range(4):
            self(f"v_mov_b32 v{4 + i}, s{52 + i}")
        self("buffer_store_dwordx4 v[4:7], v1, s[96:99], s100 offen")

    def prefetch_code(self, target, nbytes, vtmp, stmp, vm=None):
        lab = self.newlabel("pc")
        self(f"s_getpc_b64 {s(stmp, 2)}")
        self.label(lab)
        self(f"s_add_u32 {s(stmp)}, {s(stmp)}, {target}-{lab}")
        self(f"s_addc_u32 {s(stmp + 1)}, {s(stmp + 1)}, 0")
        self(f"v_and_b32 {v(vtmp)}, 63, v0")
        self(f"v_lshlrev_b32 {v(vtmp)}, 6, {v(vtmp)}")
        for off in range(0, nbytes, 4096):
            if off:
                self(f"v_add_u32 {v(vtmp)}, 0x1000, {v(vtmp)}")
            if vm is not None:
                vm.issue(("PFC",))
            self(f"global_load_dword {v(vtmp + 1)}, {v(vtmp)}, {s(stmp, 2)}")

    def srd(self, dst, base_lo, off, size):
        if isinstance(off, str):
            self(f"s_add_u32 {s(dst)}, {s(base_lo)}, {off}")
            self(f"s_addc_u32 {s(dst + 1)}, {s(base_lo + 1)}, 0")
        elif off:
            self(f"s_add_u32 {s(dst)}, {s(base_lo)}, 0x{off:x}")
            self(f"s_addc_u32 {s(dst + 1)}, {s(base_lo + 1)}, 0")
        else:
            self(f"s_mov_b32 {s(dst)}, {s(base_lo)}")
            self(f"s_mov_b32 {s(dst + 1)}, {s(base_lo + 1)}")
        self(f"s_mov_b32 {s(dst + 2)}, 0x{size:x}")
        self(f"s_mov_b32 {s(dst + 3)}, 0x00020000")
```

```python
from asmlib import Kernel, a, s, v
from gen import *


class Cnt:
    def __init__(self, k, name, maxn):
        self.k, self.name, self.maxn = k, name, maxn
        self.q = []

    def issue(self, tag):
        if len(self.q) >= self.maxn:
            self.wait_n(self.maxn - 1)
        self.q.append(tag)

    def wait_n(self, n):
        if len(self.q) > n:
            self.k(f"s_waitcnt {self.name}({n})")
            self.q = self.q[len(self.q) - n:] if n else []

    def wait(self, tag):
        if tag in self.q:
            i = max(j for j, t in enumerate(self.q) if t == tag)
            self.wait_n(len(self.q) - 1 - i)

    def drain(self):
        self.wait_n(0)


def unpack(k, dst, src, hi):
    if hi:
        k(f"v_and_b32 {v(dst)}, 0xffff0000, {v(src)}")
    else:
        k(f"v_lshlrev_b32 {v(dst)}, 16, {v(src)}")


def round_pairs(k, regs, tmp):
    for i in range(0, len(regs), 2):
        k(f"v_cvt_pk_bf16_f32 {v(tmp)}, {v(regs[i])}, {v(regs[i + 1])}")
        unpack(k, regs[i], tmp, 0)
        unpack(k, regs[i + 1], tmp, 1)


def ln_stats(k, S, n, MB, RI, tmp):
    for j in range(n):
        k(f"v_mul_f32 {v(S + 2 * j)}, {hx(1.0 / D)}, {v(S + 2 * j)}")
        k(f"v_mul_f32 {v(S + 2 * j + 1)}, {hx(1.0 / D)}, {v(S + 2 * j + 1)}")
        k(f"v_fma_f32 {v(S + 2 * j + 1)}, -{v(S + 2 * j)}, {v(S + 2 * j)}, {v(S + 2 * j + 1)}")
        k(f"v_max_f32 {v(S + 2 * j + 1)}, 0, {v(S + 2 * j + 1)}")
        k(f"v_cvt_pk_bf16_f32 {v(tmp)}, {v(S + 2 * j)}, {v(S + 2 * j + 1)}")
        unpack(k, MB + j, tmp, 0)
        unpack(k, RI + j, tmp, 1)
        k(f"v_add_f32 {v(RI + j)}, {hx(1e-5)}, {v(RI + j)}")
    round_pairs(k, [RI + j for j in range(n)], tmp)
    for j in range(n):
        k(f"v_sqrt_f32 {v(RI + j)}, {v(RI + j)}")
    round_pairs(k, [RI + j for j in range(n)], tmp)
    for j in range(n):
        k(f"v_rcp_f32 {v(RI + j)}, {v(RI + j)}")


KOFF = 512
UOFF = KOFF + KR_CH
UST = 4640
CONV_LDS = UOFF + 8 * UST


def gen_conv(variants):
    name = "conv"
    k = Kernel(name)
    k.stubs = [(nm, [f"s_movk_i32 s35, 0x{xi >> 16:x}", f"s_movk_i32 s36, 0x{st >> 16:x}", f"s_movk_i32 s37, 0x{xo >> 16:x}"])
               for nm, xi, st, xo in variants]
    k.maxs = 37
    k.tl = os.environ.get('TL', '') == '1'
    if k.tl:
        for (nm, lines), li in zip(k.stubs, (4, 1)):
            lines.append(f"s_mov_b32 s57, {li}")
    k.tl_start()
    ws_xin, ws_st, ws_xout = "s35", "s36", "s37"
    k.diag = DIAG == name
    done = f"{name}_done"
    k("s_load_dwordx2 s[4:5], s[0:1], 120")
    k("s_load_dwordx2 s[6:7], s[0:1], 64")
    k(f"s_cmp_ge_u32 s2, {D}")
    k(f"s_cbranch_scc1 {done}")
    k.stamp(real=True)
    k.stamp()
    for r in (35, 36, 37):
        k(f"s_lshl_b32 s{r}, s{r}, 16")
    X, H = 4, 8
    S = 16
    MB, RI = 32, 40
    XF = 48
    TMP = 56
    XO = 136
    HB = 140
    k("v_lshlrev_b32 v1, 4, v0")
    k("v_lshlrev_b32 v2, 6, v0")
    k("v_and_b32 v3, 63, v0")
    k("v_lshlrev_b32 v3, 4, v3")
    k("v_readfirstlane_b32 s24, v0")
    k("s_lshr_b32 s24, s24, 6")
    k("s_lshl_b32 s26, s2, 8")
    k(f"s_mul_i32 s27, s2, {KR_CH}")
    k("s_lshr_b32 s28, s2, 1")
    k("s_lshl_b32 s28, s28, 2")
    k("s_waitcnt lgkmcnt(0)")
    k("s_load_dword s29, s[6:7], s28")
    k.srd(8, 4, ws_xin, XT_BYTES)
    k.srd(12, 4, ws_st, ST_BYTES)
    k(f"s_add_u32 s30, s27, 0x{WS_KR:x}")
    k("s_add_u32 s16, s4, s30")
    k("s_addc_u32 s17, s5, 0")
    k(f"s_mov_b32 s18, {KR_CH}")
    k("s_mov_b32 s19, 0x00020000")
    k.srd(20, 4, ws_xout, XT_BYTES)
    k("s_mov_b32 s33, s26")
    k(f"s_load_dword s32, s[16:17], {KR_PART}")
    k(f"v_lshrrev_b32 {v(XO)}, 4, v0")
    k(f"v_lshlrev_b32 {v(XO)}, 17, {v(XO)}")
    k("v_and_b32 v1, 15, v0")
    k(f"v_lshl_add_u32 {v(XO)}, v1, 4, {v(XO)}")
    k(f"buffer_load_dwordx4 {v(X, 4)}, {v(XO)}, s[8:11], s33 offen")
    for j in range(4):
        k(f"buffer_load_dwordx4 {v(S + 4 * j, 4)}, v2, s[12:15], 0 offen offset:{16 * j}")
    k("s_lshl_b32 s25, s24, 10")
    k(f"s_add_u32 m0, s25, {KOFF}")
    k("buffer_load_dwordx4 v3, s[16:19], s25 offen lds")
    k("s_cmp_lg_u32 s24, 0")
    k(f"s_cbranch_scc1 {name}_nok8")
    k("s_mov_b32 s25, 4096")
    k(f"s_mov_b32 m0, {KOFF + 4096}")
    k("buffer_load_dwordx4 v3, s[16:19], s25 offen lds")
    k.label(f"{name}_nok8")
    for r in range(4):
        k(f"v_mov_b32 {v(TMP + r)}, 0")
    k("v_lshrrev_b32 v1, 5, v0")
    k("v_and_b32 v2, 31, v0")
    k(f"v_mul_u32_u24 v1, {UST}, v1")
    k("v_cmp_eq_u32 vcc, 20, v2")
    k("v_mov_b32 v3, 276")
    k("v_cndmask_b32 v3, v2, v3, vcc")
    k("v_lshl_add_u32 v1, v3, 4, v1")
    k("v_cmp_gt_u32 vcc, 21, v2")
    k("s_and_saveexec_b64 s[30:31], vcc")
    k(f"ds_write_b128 v1, {v(TMP, 4)} offset:{UOFF}")
    k("s_mov_b64 exec, s[30:31]")
    k("s_waitcnt vmcnt(1)")
    k.stamp()
    ln_stats(k, S, 8, MB, RI, TMP + 4)
    for j in range(8):
        unpack(k, XF + j, X + j // 2, j & 1)
        k(f"v_sub_f32 {v(XF + j)}, {v(XF + j)}, {v(MB + j)}")
    round_pairs(k, [XF + j for j in range(8)], TMP + 4)
    for j in range(8):
        k(f"v_mul_f32 {v(XF + j)}, {v(XF + j)}, {v(RI + j)}")
    for j in range(4):
        k(f"v_cvt_pk_bf16_f32 {v(HB + j)}, {v(XF + 2 * j)}, {v(XF + 2 * j + 1)}")
    for j in range(8):
        unpack(k, XF + j, HB + j // 2, j & 1)
    for j in range(4):
        k(f"v_cvt_pk_f16_f32 {v(H + j)}, {v(XF + 2 * j)}, {v(XF + 2 * j + 1)}")
    k("v_lshlrev_b32 v1, 4, v0")
    k(f"ds_write_b128 v1, {v(H, 4)} offset:{UOFF + 320}")
    k("s_waitcnt lgkmcnt(0)")
    k("s_barrier")
    k.stamp()
    k(f"ds_read_b128 {v(H + 4, 4)}, v1 offset:{UOFF + 336}")
    k("v_and_b32 v2, 7, v0")
    k("v_lshrrev_b32 v3, 3, v0")
    k(f"v_lshlrev_b32 {v(TMP)}, 1, v2")
    k(f"v_mul_u32_u24 {v(TMP + 1)}, {UST - 2}, v3")
    k(f"v_add_u32 {v(TMP + 1)}, {v(TMP + 1)}, {v(TMP)}")
    k("v_cmp_lt_u32 vcc, v2, v3")
    k("v_cmp_gt_u32 s[30:31], 64, v0")
    k("s_and_b64 vcc, vcc, s[30:31]")
    k("s_and_saveexec_b64 s[30:31], vcc")
    k(f"ds_read_u16 {v(TMP + 2)}, {v(TMP)} offset:{UOFF + 320}")
    k("s_waitcnt lgkmcnt(0)")
    k(f"ds_write_b16 {v(TMP + 1)}, {v(TMP + 2)} offset:{UOFF + 19 * 16 + 16}")
    k("s_mov_b64 exec, s[30:31]")
    k("s_waitcnt lgkmcnt(0)")
    T2 = 16
    for r in range(1, 8):
        sidx = r // 2
        dst = T2 + 4 * (r - 1)
        if r == 4:
            src = H + 2
        elif r & 1:
            for j in range(4):
                k(f"v_alignbit_b32 {v(dst + j)}, {v(H + sidx + j + 1)}, {v(H + sidx + j)}, 16")
            src = dst
        else:
            for j in range(4):
                k(f"v_mov_b32 {v(dst + j)}, {v(H + sidx + j)}")
            src = dst
        k(f"ds_write_b128 v1, {v(src, 4)} offset:{UOFF + r * UST + 320}")
    VA, VB = 12, 13
    k("v_and_b32 v2, 15, v0")
    k("v_bfe_u32 v3, v0, 4, 2")
    k(f"v_sub_u32 {v(VA)}, v3, v2")
    k(f"v_lshlrev_b32 {v(VA)}, 4, {v(VA)}")
    k("s_lshl_b32 s25, s24, 6")
    k(f"s_sub_u32 s26, {KOFF + 48 + 192}, s25")
    k(f"v_add_u32 {v(VA)}, s26, {v(VA)}")
    k(f"v_and_b32 {v(TMP)}, 7, v2")
    k(f"v_mul_u32_u24 {v(VB)}, {UST}, {v(TMP)}")
    k(f"v_lshrrev_b32 {v(TMP + 1)}, 3, v2")
    k(f"v_lshl_add_u32 {v(VB)}, {v(TMP + 1)}, 8, {v(VB)}")
    k(f"v_lshl_add_u32 {v(VB)}, v3, 4, {v(VB)}")
    k(f"s_sub_u32 s26, {UOFF + 320 - 512 + 192}, s25")
    k(f"v_add_u32 {v(VB)}, s26, {v(VB)}")
    VA2, VB2 = 14, 15
    k(f"v_subrev_u32 {v(VA2)}, 256, {v(VA)}")
    k(f"v_subrev_u32 {v(VB2)}, 256, {v(VB)}")
    ACC = 32
    AR = 64
    BR = 100
    for r in range(32):
        k(f"v_mov_b32 {v(ACC + r)}, 0")
    k("s_waitcnt vmcnt(0) lgkmcnt(0)")
    k("s_barrier")
    k.stamp()
    lg = Cnt(k, "lgkmcnt", 15)

    def areg(slot, part):
        return AR + slot * 4

    def loadA(ps, kk, slot):
        for part in range(1):
            lg.issue(("A", ps, kk, part))
            k(f"ds_read_b128 {v(areg(slot, part), 4)}, {v(VA if ps == 0 else VA2)} offset:{512 * (8 - kk)}")

    def loadB(ps, m):
        slot = m if m >= 0 else 8
        lg.issue(("B", ps, m))
        k(f"ds_read_b128 {v(BR + 4 * slot, 4)}, {v(VB if ps == 0 else VB2)} offset:{512 * (m + 1)}")

    def mm(ps, t, kk, slot, m):
        bslot = m if m >= 0 else 8
        lg.wait(("B", ps, m))
        for part in range(1):
            lg.wait(("A", ps, kk, part))
            k(f"v_mfma_f32_16x16x32_f16 {v(ACC + 4 * t, 4)}, {v(areg(slot, part), 4)}, {v(BR + 4 * bslot, 4)}, {v(ACC + 4 * t, 4)}")

    loadB(0, 0)
    for kk in range(7):
        loadA(0, kk, kk)
    for m in range(8):
        for kk in range(8 - m):
            mm(0, m + kk, kk, kk, m)
            if m == 0 and kk == 0:
                loadA(0, 7, 7)
            if m == 0 and 1 <= kk <= 7:
                loadB(0, kk)
        if m == 0:
            lg.drain()
            k("s_cmp_lg_u32 s24, 0")
            k(f"s_cbranch_scc1 {name}_noext")
            loadA(0, 8, 8)
            loadB(0, -1)
            for t in range(8):
                mm(0, t, t + 1, t + 1, -1)
            lg.drain()
            k.label(f"{name}_noext")
        loadB(1, m)
        loadA(1, m, 7 - m)
    for m in range(8):
        for kk in range(8 - m):
            mm(1, m + kk, kk, 7 - kk, m)
    lg.drain()
    k.stamp()
    k("s_barrier")
    ET = 16
    k(f"v_and_b32 {v(ET)}, 7, v2")
    k(f"v_lshrrev_b32 {v(ET + 1)}, 3, v2")
    k(f"v_lshlrev_b32 {v(ET + 2)}, 2, {v(ET)}")
    k(f"v_lshl_add_u32 {v(ET + 2)}, {v(ET + 1)}, 9, {v(ET + 2)}")
    k(f"v_lshl_add_u32 {v(ET + 2)}, v3, 7, {v(ET + 2)}")
    k("s_lshl_b32 s25, s24, 13")
    k(f"v_add_u32 {v(ET + 2)}, s25, {v(ET + 2)}")
    k(f"v_and_b32 {v(ET + 3)}, 1, v3")
    k(f"v_lshl_or_b32 {v(ET + 3)}, {v(ET + 1)}, 1, {v(ET + 3)}")
    for kk in range(4):
        k(f"v_xor_b32 {v(ET + 4 + kk)}, {kk}, {v(ET + 3)}")
        k(f"v_lshl_add_u32 {v(ET + 4 + kk)}, {v(ET + 4 + kk)}, 5, {v(ET + 2)}")
    for t in range(8):
        for kk in range(4):
            k(f"ds_write_b32 {v(ET + 4 + kk)}, {v(ACC + 4 * t + kk)} offset:{UOFF + 1024 * t}")
        if t % 3 == 2:
            k("s_waitcnt lgkmcnt(0)")
    k("s_waitcnt lgkmcnt(0)")
    k("s_barrier")
    k.stamp()
    k("v_bfe_u32 v2, v0, 2, 1")
    k("v_bfe_u32 v3, v0, 4, 1")
    k("v_lshl_or_b32 v2, v3, 1, v2")
    k("v_xor_b32 v2, v2, v0")
    k("v_lshlrev_b32 v2, 5, v2")
    R = 64
    for w in range(4):
        k(f"ds_read_b128 {v(R + 8 * w, 4)}, v2 offset:{UOFF + 8192 * w}")
        k(f"ds_read_b128 {v(R + 8 * w + 4, 4)}, v2 offset:{UOFF + 8192 * w + 16}")
    k("s_and_b32 s25, s2, 1")
    k("s_lshl_b32 s25, s25, 4")
    k("s_lshr_b32 s29, s29, s25")
    k("s_lshl_b32 s29, s29, 16")
    HD = 16
    for j in range(8):
        unpack(k, HD + j, HB + j // 2, j & 1)
        k(f"v_mul_f32 {v(HD + j)}, s29, {v(HD + j)}")
    round_pairs(k, [HD + j for j in range(8)], TMP)
    for j in range(8):
        unpack(k, XF + j, X + j // 2, j & 1)
    k("s_waitcnt lgkmcnt(0)")
    for j in range(8):
        k(f"v_add_f32 {v(R + j)}, {v(R + j)}, {v(R + 8 + j)}")
        k(f"v_add_f32 {v(R + 16 + j)}, {v(R + 16 + j)}, {v(R + 24 + j)}")
        k(f"v_add_f32 {v(R + j)}, {v(R + j)}, {v(R + 16 + j)}")
        k(f"v_mul_f32 {v(R + j)}, s32, {v(R + j)}")
    round_pairs(k, [R + j for j in range(8)], TMP)
    for j in range(8):
        k(f"v_add_f32 {v(R + j)}, {v(R + j)}, {v(HD + j)}")
    round_pairs(k, [R + j for j in range(8)], TMP)
    for j in range(8):
        k(f"v_add_f32 {v(R + j)}, {v(R + j)}, {v(XF + j)}")
    for j in range(4):
        k(f"v_cvt_pk_bf16_f32 {v(TMP + j)}, {v(R + 2 * j)}, {v(R + 2 * j + 1)}")
    k(f"buffer_store_dwordx4 {v(TMP, 4)}, {v(XO)}, s[20:23], s33 offen")
    k.stamp()
    k.stamp(real=True)
    k.dump_stamps(4, WS_DIAG)
    k.tl_end(4, WS_DIAG)
    k.label(done)
    k("s_endpgm")
    return k


def extend(kernels, launches):
    kernels.append(gen_conv([("conv2_kernel", WS_X2T, WS_ST2, WS_X3T), ("conv1_kernel", WS_X0T, WS_ST0, WS_X1T)]))
    launches.append(("conv1_kernel", D, 256, CONV_LDS))
    try:
        import gen3
        gen3.extend(kernels, launches)
    except ImportError:
        pass
```

```python
from asmlib import Kernel, a, s, v
from gen import *
from gen2 import Cnt, unpack, round_pairs, ln_stats, gen_conv, CONV_LDS

import os
EXP = os.environ.get('EXP', 'norot')
OOB = 0x40000000
G1_STAT = 131072
GLT = GKS * 1024


STG = 40960
G1_LDS = 4 * STG


def gen_gemm1(variants):
    name = "gemm1"
    k = Kernel(name)
    k.stubs = [(nm, [f"s_mov_b32 s50, 0x{xi:x}"]) for nm, xi in variants]
    k.maxs = 50
    k.tl = os.environ.get('TL', '') == '1'
    if k.tl:
        for (nm, lines), li in zip(k.stubs, (5, 2)):
            lines.append(f"s_mov_b32 s57, {li}")
    k.tl_start()
    ws_xin = "s50"
    k.diag = DIAG == name
    done = f"{name}_done"
    k("s_load_dwordx2 s[4:5], s[0:1], 120")
    k("s_cmp_ge_u32 s2, 256")
    k(f"s_cbranch_scc1 {done}")
    k.stamp(real=True)
    k.stamp()
    k("v_readfirstlane_b32 s47, v0")
    k("s_lshr_b32 s47, s47, 6")
    k("s_lshr_b32 s46, s47, 2")
    k("s_and_b32 s24, s47, 3")
    k("s_and_b32 s25, s2, 7")
    k("s_lshr_b32 s26, s2, 3")
    k("s_lshr_b32 s27, s25, 1")
    k("s_lshl_b32 s27, s27, 2")
    k("s_and_b32 s28, s26, 3")
    k("s_add_u32 s27, s27, s28")
    k("s_and_b32 s28, s25, 1")
    k("s_lshl_b32 s28, s28, 3")
    k("s_lshr_b32 s29, s26, 2")
    k("s_add_u32 s28, s28, s29")
    k("s_mul_i32 s29, s28, 11")
    k("s_mul_i32 s30, s24, 3")
    k("s_add_u32 s29, s29, s30")
    SA, SG, SC = 32, 36, 40
    for mt in range(3):
        k(f"s_add_u32 s30, s29, {mt}")
        k(f"s_lshl_b32 {s(SA + mt)}, s30, 14")
        k(f"s_lshl_b32 {s(SC + mt)}, s30, 6")
        k("s_lshr_b32 s31, s30, 2")
        k("s_lshl_b32 s31, s31, 10")
        k("s_and_b32 s30, s30, 3")
        k("s_lshl_b32 s30, s30, 8")
        k("s_add_u32 s31, s31, s30")
        k(f"s_mul_i32 s30, s27, {8 * GLT}")
        k(f"s_add_u32 {s(SG + mt)}, s31, s30")
    k("s_cmp_eq_u32 s24, 3")
    k(f"s_cselect_b32 {s(SA + 2)}, 0x{NPT * 16384:x}, {s(SA + 2)}")
    k(f"s_cselect_b32 {s(SG + 2)}, 0x{OOB:x}, {s(SG + 2)}")
    k(f"s_cselect_b32 {s(SC + 2)}, 0x{OOB:x}, {s(SC + 2)}")
    k("s_lshl_b32 s30, s46, 10")
    for mt in range(3):
        k(f"s_add_u32 {s(SA + mt)}, {s(SA + mt)}, s30")
        if mt:
            k(f"s_sub_u32 {s(SA + mt)}, {s(SA + mt)}, {mt * 1024}")
    VB, VA = 8, 16
    GR, CSR, CS2 = 20, 24, 36
    ACC = 48
    AF, BF = 96, 120
    k("v_and_b32 v3, 63, v0")
    k("v_lshlrev_b32 v1, 4, v3")
    k("v_lshrrev_b32 v4, 4, v3")
    k("v_and_b32 v5, 15, v3")
    k("s_and_b32 s30, s47, 1")
    k("s_lshl_b32 s30, s30, 3")
    k("v_lshlrev_b32 v6, 1, v4")
    k("v_or_b32 v6, s30, v6")
    k("v_xor_b32 v6, v6, v5")
    k("v_lshlrev_b32 v6, 4, v6")
    k("v_lshl_add_u32 v2, v4, 8, v6")
    k("s_lshl_b32 s44, s47, 11")
    k("s_lshl_b32 s31, s27, 17")
    k("s_add_u32 s30, s44, s31")
    k("v_add_u32 v2, s30, v2")
    k(f"s_mul_i32 s45, s46, 12288")
    k("s_mul_i32 s30, s24, 3072")
    k("s_add_u32 s45, s45, s30")
    k("s_add_u32 s45, s45, 16384")
    k("s_waitcnt lgkmcnt(0)")
    k.srd(8, 4, ws_xin, XT_BYTES)
    k.srd(12, 4, WS_W1, W1_BYTES)
    k.srd(16, 4, WS_CS, 2 * CS_HALF)
    k.srd(20, 4, WS_G, G_BYTES)
    vm = Cnt(k, "vmcnt", 60)
    lg = Cnt(k, "lgkmcnt", 15)

    def dma(i, q):
        slot = (i % 4) * STG
        if q == 0:
            k(f"s_add_u32 m0, s44, {slot}")
            k(f"s_mov_b32 s48, {i * 16384}")
        if q < 2:
            vm.issue(("S", i))
            k(f"buffer_load_dwordx4 v2, s[8:11], s48 offen offset:{1024 * q} lds")
            return
        mt = q - 2
        if mt == 0:
            k(f"s_add_u32 m0, s45, {slot}")
        if i:
            k(f"s_add_u32 {s(SA + mt)}, {s(SA + mt)}, 2048")
        vm.issue(("S", i))
        k(f"buffer_load_dwordx4 v1, s[12:15], {s(SA + mt)} offen offset:{1024 * mt} lds")

    PRO = int(os.environ.get('PRO1', '3'))
    for i in range(PRO):
        for q in range(5):
            dma(i, q)
    k("v_lshrrev_b32 v6, 2, v5")
    k("v_and_b32 v7, 1, v4")
    k("v_lshlrev_b32 v7, 3, v7")
    k("v_lshl_or_b32 v7, v6, 1, v7")
    k("v_lshlrev_b32 v7, 4, v7")
    k("v_lshl_add_u32 v6, v4, 3, v6")
    k("v_lshlrev_b32 v6, 8, v6")
    k("v_and_b32 v18, 3, v3")
    k("v_lshl_add_u32 v6, v18, 3, v6")
    k("s_lshl_b32 s49, s46, 2")
    for jl in range(4):
        k(f"s_add_u32 s30, s24, {jl}")
        k("s_and_b32 s30, s30, 3")
        k("s_add_u32 s30, s30, s49")
        k("s_lshl_b32 s30, s30, 5")
        k(f"v_xor_b32 {v(VB + jl)}, s30, v7")
        k(f"v_add_u32 {v(VB + jl)}, {v(VB + jl)}, v6")
        k(f"v_add_u32 {v(VB + 4 + jl)}, {2 * STG}, {v(VB + jl)}")
    k("s_mul_i32 s30, s24, 3072")
    k("s_add_u32 s30, s30, 16384")
    k(f"v_add_u32 {v(VA)}, s30, v1")
    k(f"v_add_u32 {v(VA + 1)}, {2 * STG}, {v(VA)}")
    for r in range(48):
        k(f"v_mov_b32 {v(ACC + r)}, 0")
    for r in range(4):
        k(f"v_mov_b32 {v(GR + r)}, 0")

    def frag_reads(ss):
        i, sub = ss // 2, ss % 2
        slot = i % 4
        vset = slot // 2
        base = (slot % 2) * STG
        par = ss % 2
        out = []
        for mt in range(3):
            def fa(mt=mt):
                lg.issue(("A", ss, mt))
                k(f"ds_read_b128 {v(AF + par * 12 + 4 * mt, 4)}, {v(VA + vset)} offset:{base + sub * 12288 + mt * 1024}")
            out.append(fa)
        for jl in range(4):
            def fb(jl=jl):
                for half in range(2):
                    lg.issue(("B", ss, jl))
                    k(f"ds_read_b64_tr_b16 {v(BF + par * 16 + 4 * jl + 2 * half, 2)}, {v(VB + 4 * vset + jl)} offset:{base + sub * 8192 + half * 1024}")
            out.append(fb)
        return out

    vm.wait(("S", 0))
    k("s_barrier")
    k.stamp(lg)
    for f in frag_reads(0):
        f()
    for i in range(PRO, 4):
        for q in range(5):
            dma(i, q)
    k("v_lshlrev_b32 v6, 4, v4")
    k(f"v_add_u32 v7, {CS_HALF}, v6")
    for ss in range(16):
        i, sub = ss // 2, ss % 2
        par = ss % 2
        pend = []
        if sub == 1 and i + 1 < 8:
            lg.drain()
            vm.wait(("S", i + 1))
            k("s_barrier")
            if i + 4 < 8:
                pend = [(lambda q=q: dma(i + 4, q)) for q in range(5)]
            if i == 4:
                def cs(mt):
                    vm.issue(("CS",))
                    k(f"buffer_load_dwordx4 {v(CSR + 4 * mt, 4)}, v6, s[16:19], {s(SC + mt)} offen")
                    vm.issue(("CS",))
                    k(f"buffer_load_dwordx4 {v(CS2 + 4 * mt, 4)}, v7, s[16:19], {s(SC + mt)} offen")
                pend = [(lambda mt=mt: cs(mt)) for mt in range(3)]
        if ss % 4 == 0:
            k.stamp(lg)
        reads = frag_reads(ss + 1) if ss + 1 < 16 else []
        fill = reads + pend
        n = 0
        for jl in range(4):
            lg.wait(("B", ss, jl))
            for mt in range(3):
                lg.wait(("A", ss, mt))
                acc = ACC + (mt * 4 + jl) * 4
                k(f"v_mfma_f32_16x16x32_bf16 {v(acc, 4)}, {v(AF + par * 12 + 4 * mt, 4)}, {v(BF + par * 16 + 4 * jl, 4)}, {v(acc, 4)}")
                if fill:
                    fill.pop(0)()
            if jl == 0:
                k(f"v_mfma_f32_16x16x32_bf16 {v(GR, 4)}, {v(BF + par * 16, 4)}, {v(BF + par * 16, 4)}, {v(GR, 4)}")
        while fill:
            fill.pop(0)()
    k.stamp(lg)
    lg.drain()
    k("s_barrier")
    JA = AF
    for jl in range(4):
        k(f"s_add_u32 s30, s24, {jl}")
        k("s_and_b32 s30, s30, 3")
        k("s_add_u32 s30, s30, s49")
        k("s_lshl_b32 s31, s30, 4")
        k(f"v_add_u32 {v(JA + jl)}, s31, v5")
        k(f"v_lshlrev_b32 {v(JA + 4 + jl)}, 2, {v(JA + jl)}")
    k("v_and_b32 v7, 3, v5")
    g = GR
    k("v_cmp_eq_u32 vcc, 1, v7")
    k(f"v_cndmask_b32 {v(g)}, {v(g)}, {v(g + 1)}, vcc")
    k("v_cmp_eq_u32 vcc, 2, v7")
    k(f"v_cndmask_b32 {v(g)}, {v(g)}, {v(g + 2)}, vcc")
    k("v_cmp_eq_u32 vcc, 3, v7")
    k(f"v_cndmask_b32 {v(g)}, {v(g)}, {v(g + 3)}, vcc")
    k("v_lshrrev_b32 v7, 2, v5")
    k("v_cmp_eq_u32 vcc, v7, v4")
    k("s_and_saveexec_b64 s[30:31], vcc")
    k(f"ds_write_b32 {v(JA + 4)}, {v(GR)} offset:512")
    k("s_mov_b64 exec, s[30:31]")
    k("s_cmp_lg_u32 s24, 3")
    k(f"s_cbranch_scc1 {name}_nosum")
    k("v_cmp_gt_u32 vcc, 16, v3")
    k("s_and_saveexec_b64 s[30:31], vcc")
    for jl in range(4):
        k(f"ds_write_b32 {v(JA + 4 + jl)}, {v(ACC + (8 + jl) * 4)}")
    k("s_mov_b64 exec, s[30:31]")
    k.label(f"{name}_nosum")
    k("s_waitcnt lgkmcnt(0)")
    k("s_barrier")
    k.stamp()
    ET = BF
    k("v_lshlrev_b32 v7, 3, v3")
    k(f"ds_read_b64 {v(ET + 8, 2)}, v7")
    k(f"ds_read_b64 {v(ET + 10, 2)}, v7 offset:512")
    vm.drain()
    for r in range(0, 12, 2):
        k(f"v_pk_add_f32 {v(CSR + r, 2)}, {v(CSR + r, 2)}, {v(CS2 + r, 2)}")
    k("s_waitcnt lgkmcnt(0)")
    S2 = ET
    k(f"v_mov_b32 {v(S2)}, {v(ET + 8)}")
    k(f"v_mov_b32 {v(S2 + 1)}, {v(ET + 10)}")
    k(f"v_mov_b32 {v(S2 + 2)}, {v(ET + 9)}")
    k(f"v_mov_b32 {v(S2 + 3)}, {v(ET + 11)}")
    MB, RI = ET + 4, ET + 6
    ln_stats(k, S2, 2, MB, RI, ET + 12)
    for j in range(2):
        k(f"v_mov_b32 {v(ET + 8 + 2 * j)}, {v(RI + j)}")
        k(f"v_mul_f32 {v(ET + 9 + 2 * j)}, {v(MB + j)}, {v(RI + j)}")
    k("s_lshl_b32 s30, s47, 10")
    k("s_add_u32 s30, s30, 1024")
    k("v_add_u32 v7, s30, v1")
    k(f"ds_write_b128 v7, {v(ET + 8, 4)}")
    k("s_waitcnt lgkmcnt(0)")
    RM = VB
    for jl in range(4):
        k(f"v_lshl_add_u32 v7, {v(JA + jl)}, 3, s30")
        k(f"ds_read_b64 {v(RM + 2 * jl, 2)}, v7")
    k("v_add_u32 v6, s24, v4")
    k("v_and_b32 v6, 3, v6")
    k("v_add_u32 v6, s49, v6")
    k(f"v_mul_u32_u24 v6, {GLT}, v6")
    k("v_lshl_add_u32 v6, v5, 4, v6")
    k(f"s_mov_b32 s30, {hx(-LOG2E)}")
    k(f"s_mov_b32 s31, {hx(-LOG2E)}")
    k("s_waitcnt lgkmcnt(0)")
    for mt in range(3):
        Ts = [ET + 16 + 4 * j for j in range(4)]
        Es = [ET + 2 * j for j in range(4)]
        OUT = ET + 8 + 4 * (mt % 2)
        for jl, T in enumerate(Ts):
            rm = v(RM + 2 * jl, 2)
            k(f"v_pk_mul_f32 {v(T, 2)}, {v(CSR + 4 * mt, 2)}, {rm} op_sel:[0,1] op_sel_hi:[1,1]")
            k(f"v_pk_mul_f32 {v(T + 2, 2)}, {v(CSR + 4 * mt + 2, 2)}, {rm} op_sel:[0,1] op_sel_hi:[1,1]")
        for jl, T in enumerate(Ts):
            acc = ACC + (mt * 4 + jl) * 4
            rm = v(RM + 2 * jl, 2)
            k(f"v_pk_fma_f32 {v(T, 2)}, {v(acc, 2)}, {rm}, {v(T, 2)} op_sel_hi:[1,0,1] neg_lo:[0,0,1] neg_hi:[0,0,1]")
            k(f"v_pk_fma_f32 {v(T + 2, 2)}, {v(acc + 2, 2)}, {rm}, {v(T + 2, 2)} op_sel_hi:[1,0,1] neg_lo:[0,0,1] neg_hi:[0,0,1]")
        for T, E in zip(Ts, Es):
            k(f"v_pk_mul_f32 {v(E, 2)}, {v(T, 2)}, s[30:31]")
        for E in Es:
            k(f"v_exp_f32 {v(E)}, {v(E)}")
            k(f"v_exp_f32 {v(E + 1)}, {v(E + 1)}")
        for T in Ts:
            k(f"v_pk_mul_f32 {v(T, 2)}, {v(T, 2)}, {v(T + 2, 2)}")
        for E in Es:
            k(f"v_pk_add_f32 {v(E, 2)}, {v(E, 2)}, 1.0 op_sel_hi:[1,0]")
        for E in Es:
            k(f"v_rcp_f32 {v(E)}, {v(E)}")
            k(f"v_rcp_f32 {v(E + 1)}, {v(E + 1)}")
        for T, E in zip(Ts, Es):
            k(f"v_pk_mul_f32 {v(T, 2)}, {v(T, 2)}, {v(E, 2)}")
        for jl, T in enumerate(Ts):
            k(f"v_cvt_pk_bf16_f32 {v(OUT + jl)}, {v(T)}, {v(T + 1)}")
        k(f"v_permlane32_swap_b32 {v(OUT)}, {v(OUT + 2)}")
        k(f"v_permlane32_swap_b32 {v(OUT + 1)}, {v(OUT + 3)}")
        k(f"v_permlane16_swap_b32 {v(OUT)}, {v(OUT + 1)}")
        k(f"v_permlane16_swap_b32 {v(OUT + 2)}, {v(OUT + 3)}")
        k(f"buffer_store_dwordx4 {v(OUT, 4)}, v6, s[20:23], {s(SG + mt)} offen")
    k.stamp()
    k.stamp(real=True)
    k.dump_stamps(4, WS_DIAG)
    k.tl_end(4, WS_DIAG)
    k.label(done)
    k("s_endpgm")
    return k


RS2 = 272
G2_RED = 64 * RS2
G2_LDS = 4 * G2_RED


def gen_gemm2(variants, ws_xout, ws_st):
    name = "gemm2"
    k = Kernel(name)
    k.stubs = [(nm, [f"s_mov_b32 s44, 0x{xi:x}", f"s_mov_b32 s45, {fl}"]) for nm, xi, fl in variants]
    k.maxs = 45
    k.tl = os.environ.get('TL', '') == '1'
    if k.tl:
        for (nm, lines), li in zip(k.stubs, (6, 3)):
            lines.append(f"s_mov_b32 s57, {li}")
    k.tl_start()
    ws_xin = "s44"
    k.diag = DIAG == name
    done = f"{name}_done"
    k("s_load_dwordx2 s[4:5], s[0:1], 120")
    k("s_load_dwordx2 s[6:7], s[0:1], 104")
    k("s_cmp_ge_u32 s2, 256")
    k(f"s_cbranch_scc1 {done}")
    k.stamp(real=True)
    k.stamp()
    k("v_readfirstlane_b32 s28, v0")
    k("s_lshr_b32 s28, s28, 6")
    k("s_and_b32 s29, s2, 7")
    k("s_lshr_b32 s30, s2, 3")
    k("s_lshl_b32 s29, s29, 2")
    k("s_and_b32 s31, s30, 3")
    k("s_add_u32 s29, s29, s31")
    k("s_lshr_b32 s30, s30, 2")
    SG, SW = 32, 36
    for i in range(4):
        k(f"s_lshl_b32 s31, s29, 2")
        k(f"s_add_u32 s31, s31, {i}")
        k(f"s_mul_i32 {s(SG + i)}, s31, {GLT}")
        k(f"s_lshl_b32 s31, s30, 2")
        k(f"s_add_u32 s31, s31, {i}")
        k(f"s_mul_i32 {s(SW + i)}, s31, {NKS2 * 1024}")
    k("v_and_b32 v3, 63, v0")
    k("v_lshlrev_b32 v1, 4, v3")
    k("s_lshl_b32 s31, s28, 10")
    k("v_add_u32 v24, s31, v1")
    k("s_lshr_b32 s42, s2, 3")
    k("s_and_b32 s42, s42, 3")
    k("s_mul_i32 s42, s42, 3")
    k("s_add_u32 s42, s42, s30")
    k("s_cmp_ge_u32 s42, 11")
    k("s_cselect_b32 s43, 11, 0")
    k("s_sub_u32 s42, s42, s43")
    if "norot" in EXP:
        k("s_mov_b32 s42, 0")
    k("s_lshl_b32 s42, s42, 12")
    k("v_and_b32 v4, 7, v0")
    k("v_lshrrev_b32 v5, 3, v0")
    k("v_lshlrev_b32 v2, 8, v5")
    k("v_lshl_add_u32 v2, v4, 4, v2")
    k("s_lshl_b32 s31, s30, 14")
    k("s_lshr_b32 s40, s29, 1")
    k("s_lshl_b32 s40, s40, 17")
    k("s_add_u32 s31, s31, s40")
    k("s_and_b32 s40, s29, 1")
    k("s_lshl_b32 s40, s40, 7")
    k("s_add_u32 s31, s31, s40")
    k("v_add_u32 v2, s31, v2")
    k("s_mov_b32 s41, 0x2000")
    k("s_waitcnt lgkmcnt(0)")
    k.srd(8, 4, WS_G, G_BYTES)
    k.srd(12, 4, WS_W2, W2_BYTES)
    k.srd(16, 4, ws_xin, XT_BYTES)
    k.srd(20, 4, ws_xout, XT_BYTES)
    k.srd(24, 4, ws_st, ST_BYTES)
    k.srd(48, 6, 0, XT_BYTES)
    ACC, ST0, XR, ET = 32, 96, 8, 16
    NSTG = int(os.environ.get('PF2', '5'))
    vm = Cnt(k, "vmcnt", 62)

    def sreg(it, off):
        return a(it * 32 + off, 4) if it < 8 else v(ST0 + (it - 8) * 32 + off, 4)

    def issue(it):
        if it:
            k("s_add_u32 s42, s42, 0x1000")
            k(f"s_cmp_ge_u32 s42, {11 * 4096}")
            k("s_cselect_b32 s42, 0, s42")
        k("v_add_u32 v1, s42, v24")
        for i in range(4):
            vm.issue(("S", it))
            k(f"buffer_load_dwordx4 {sreg(it, 4 * i)}, v1, s[8:11], {s(SG + i)} offen")
            vm.issue(("S", it))
            k(f"buffer_load_dwordx4 {sreg(it, 16 + 4 * i)}, v1, s[12:15], {s(SW + i)} offen")

    NIT = 11
    for it in range(NSTG):
        issue(it)
    vm.issue(("XR",))
    k(f"buffer_load_dwordx4 {v(XR, 4)}, v2, s[16:19], 0 offen")
    vm.issue(("XR",))
    k(f"buffer_load_dwordx4 {v(XR + 4, 4)}, v2, s[16:19], s41 offen")
    for r in range(64):
        k(f"v_mov_b32 {v(ACC + r)}, 0")
    for it in range(NIT):
        vm.wait(("S", it))
        if it in (0, 1, 3, 6, 9):
            k.stamp()
        for aa in range(4):
            for b in range(4):
                acc = ACC + (aa * 4 + b) * 4
                k(f"v_mfma_f32_16x16x32_bf16 {v(acc, 4)}, {sreg(it, 4 * aa)}, {sreg(it, 16 + 4 * b)}, {v(acc, 4)}")
        if it + NSTG < NIT:
            issue(it + NSTG)
    k.stamp()
    k("v_and_b32 v6, 15, v3")
    k("v_lshrrev_b32 v7, 4, v3")
    k(f"v_mul_u32_u24 v6, {RS2}, v6")
    k("v_lshl_add_u32 v6, v7, 4, v6")
    k(f"s_mul_i32 s31, s28, {G2_RED}")
    k("v_add_u32 v6, s31, v6")
    n = 0
    for aa in range(4):
        for b in range(4):
            acc = ACC + (aa * 4 + b) * 4
            k(f"ds_write_b128 v6, {v(acc, 4)} offset:{b * 16 * RS2 + aa * 64}")
            n += 1
            if n % 8 == 0:
                k("s_waitcnt lgkmcnt(0)")
    k("s_barrier")
    k.stamp()
    k(f"v_mul_u32_u24 v6, {RS2}, v5")
    k("v_lshl_add_u32 v6, v4, 5, v6")
    R = 96
    for dd in range(2):
        for w in range(4):
            for hf in range(2):
                k(f"ds_read_b128 {v(R + dd * 32 + w * 8 + 4 * hf, 4)}, v6 offset:{w * G2_RED + dd * 32 * RS2 + 16 * hf}")
        k("s_waitcnt lgkmcnt(0)")
    vm.drain()
    O = 32
    PK = 48
    XF = 56
    for dd in range(2):
        for j in range(8):
            r0 = R + dd * 32 + j
            k(f"v_add_f32 {v(r0)}, {v(r0)}, {v(r0 + 8)}")
            k(f"v_add_f32 {v(r0 + 16)}, {v(r0 + 16)}, {v(r0 + 24)}")
            k(f"v_add_f32 {v(O + dd * 8 + j)}, {v(r0)}, {v(r0 + 16)}")
        round_pairs(k, [O + dd * 8 + j for j in range(8)], ET)
        for j in range(8):
            unpack(k, XF + j, XR + dd * 4 + j // 2, j & 1)
            k(f"v_add_f32 {v(O + dd * 8 + j)}, {v(O + dd * 8 + j)}, {v(XF + j)}")
        for j in range(4):
            k(f"v_cvt_pk_bf16_f32 {v(PK + dd * 4 + j)}, {v(O + dd * 8 + 2 * j)}, {v(O + dd * 8 + 2 * j + 1)}")
    k("s_cmp_lg_u32 s45, 0")
    k(f"s_cbranch_scc1 {name}_final")
    if True:
        k(f"buffer_store_dwordx4 {v(PK, 4)}, v2, s[20:23], 0 offen")
        k(f"buffer_store_dwordx4 {v(PK + 4, 4)}, v2, s[20:23], s41 offen")
        SV, QV = 64, 72
        for dd in range(2):
            for j in range(8):
                unpack(k, O + dd * 8 + j, PK + dd * 4 + j // 2, j & 1)
        for j in range(8):
            k(f"v_add_f32 {v(SV + j)}, {v(O + j)}, {v(O + 8 + j)}")
            k(f"v_mul_f32 {v(QV + j)}, {v(O + j)}, {v(O + j)}")
            k(f"v_fmac_f32 {v(QV + j)}, {v(O + 8 + j)}, {v(O + 8 + j)}")
        for base in (SV, QV):
            for j in range(4):
                k(f"v_permlane32_swap_b32 {v(base + j)}, {v(base + j + 4)}")
            for j in range(4):
                k(f"v_add_f32 {v(base + j)}, {v(base + j)}, {v(base + j + 4)}")
        for base in (SV, QV):
            for j in range(2):
                k(f"v_permlane16_swap_b32 {v(base + j)}, {v(base + j + 2)}")
            for j in range(2):
                k(f"v_add_f32 {v(base + j)}, {v(base + j)}, {v(base + j + 2)}")
        for base in (SV, QV):
            for j in range(2):
                k(f"v_add_f32_dpp {v(base + 4 + j)}, {v(base + j)}, {v(base + j)} row_ror:8 row_mask:0xf bank_mask:0xf")
        k("v_and_b32 v6, 8, v3")
        k("v_cmp_eq_u32 vcc, 0, v6")
        k(f"v_cndmask_b32 {v(SV)}, {v(SV + 5)}, {v(SV + 4)}, vcc")
        k(f"v_cndmask_b32 {v(QV)}, {v(QV + 5)}, {v(QV + 4)}, vcc")
        k("v_lshrrev_b32 v6, 3, v3")
        k("v_lshl_add_u32 v6, v4, 3, v6")
        k("v_lshlrev_b32 v6, 3, v6")
        k("s_lshl_b32 s31, s29, 9")
        k(f"buffer_atomic_add_f32 {v(SV)}, v6, s[24:27], s31 offen")
        k(f"buffer_atomic_add_f32 {v(QV)}, v6, s[24:27], s31 offen offset:4")
        k(f"s_branch {name}_tail")
    k.label(f"{name}_final")
    k.fence(4)
    if True:
        RT = 144
        k("s_barrier")
        k(f"v_mul_u32_u24 v6, {8 * RT}, v4")
        k("v_lshl_add_u32 v6, v5, 1, v6")
        for dd in range(2):
            for j in range(8):
                op = "ds_write_b16_d16_hi" if j & 1 else "ds_write_b16"
                k(f"{op} v6, {v(PK + dd * 4 + j // 2)} offset:{j * RT + dd * 64}")
            k("s_waitcnt lgkmcnt(0)")
        k("s_barrier")
        k(f"v_mul_u32_u24 v6, {RT}, v5")
        k("v_lshl_add_u32 v6, v4, 4, v6")
        k(f"ds_read_b128 {v(O, 4)}, v6")
        k(f"ds_read_b128 {v(O + 4, 4)}, v6 offset:{32 * RT}")
        k("v_lshlrev_b32 v7, 10, v5")
        k("v_lshl_add_u32 v7, v4, 4, v7")
        k("s_lshl_b32 s31, s29, 16")
        k("s_lshl_b32 s40, s30, 7")
        k("s_add_u32 s31, s31, s40")
        k("s_add_u32 s40, s31, 0x8000")
        k("s_waitcnt lgkmcnt(0)")
        k(f"buffer_store_dwordx4 {v(O, 4)}, v7, s[48:51], s31 offen")
        k(f"buffer_store_dwordx4 {v(O + 4, 4)}, v7, s[48:51], s40 offen")
    k.label(f"{name}_tail")
    k.stamp()
    k.stamp(real=True)
    k.dump_stamps(4, WS_DIAG)
    k.tl_end(4, WS_DIAG)
    k.label(done)
    k("s_endpgm")
    return k


def extend(kernels, launches):
    kernels.append(gen_gemm1([("gemm1b_kernel", WS_X3T), ("gemm1a_kernel", WS_X1T)]))
    kernels.append(gen_gemm2([("gemm2b_kernel", WS_X3T, 1), ("gemm2a_kernel", WS_X1T, 0)], WS_X2T, WS_ST2))
    launches.append(("gemm1a_kernel", 256, 512, G1_LDS))
    launches.append(("gemm2a_kernel", 256, 256, G2_LDS))
    launches.append(("conv2_kernel", D, 256, CONV_LDS))
    launches.append(("gemm1b_kernel", 256, 512, G1_LDS))
    launches.append(("gemm2b_kernel", 256, 256, G2_LDS))
```

```python
import struct
import sys

from asmlib import Kernel, a, s, v

L, D, NST, F = 2048, 512, 128, 1376

KR_PART = 4608
KR_CH = 5120
P0 = 2072
WS_KR = 0x0000000
WS_X0T = 0x0500000
WS_X1T = 0x0700000
WS_X2T = 0x0900000
WS_X3T = 0x0B00000
XT_BYTES = D * L * 2
WS_ST0 = 0x0D00000
WS_ST2 = 0x0D10000
ST_BYTES = L * 8
WS_CS = 0x0D20000
NPT = 176
CS_HALF = NPT * 16 * 4
WS_W1 = 0x0E00000
W1_BYTES = (NPT + 1) * 16 * 1024
WS_W2 = 0x1100000
NKS2 = 43
W2_BYTES = 32 * NKS2 * 1024
WS_G = 0x1300000
GKS = 44
G_BYTES = 128 * GKS * 1024
WS_DIAG = 0x1A00000
import os
DIAG = os.environ.get('DIAG', '')


def f32bits(x):
    return struct.unpack("<I", struct.pack("<f", x))[0]


def hx(x):
    return f"0x{f32bits(x):08x}"


LOG2E = 1.4426950408889634
LOG2E_HI = struct.unpack("<f", struct.pack("<f", LOG2E))[0]
LOG2E_LO = LOG2E - LOG2E_HI
LN2 = 0.6931471805599453
INV2PI = 0.15915494309189535
ONES_BF16 = 0x3F803F80


N_KGEN, N_X0, N_W1, N_W2 = 512, 64, 88, 43
PREP_GRID = N_KGEN + N_X0 + N_W1 + N_W2
PREP_LDS = 36864


def row4_sum(k, x, t):
    k(f"v_mov_b32 {v(t)}, {v(x)}")
    k(f"v_permlane16_swap_b32 {v(x)}, {v(t)}")
    k(f"v_add_f32 {v(x)}, {v(x)}, {v(t)}")
    k(f"v_mov_b32 {v(t)}, {v(x)}")
    k(f"v_permlane32_swap_b32 {v(x)}, {v(t)}")
    k(f"v_add_f32 {v(x)}, {v(x)}, {v(t)}")


def gen_prep():
    k = Kernel("prep_kernel")
    k.diag = DIAG == "prep_kernel"
    k.tl = os.environ.get('TL', '') == '1'
    if k.tl:
        k("s_mov_b32 s57, 0")
    k.tl_start()
    k("s_load_dwordx16 s[16:31], s[0:1], 0")
    k("s_load_dwordx8 s[32:39], s[0:1], 80")
    k("s_load_dwordx2 s[40:41], s[0:1], 120")
    k(f"s_cmp_ge_u32 s2, {PREP_GRID}")
    k("s_cbranch_scc1 prep_done")
    k.stamp(real=True)
    k.stamp()
    k(f"s_cmp_ge_u32 s2, {N_KGEN}")
    k("s_cbranch_scc1 prep_not_kgen")

    PRM = 8
    ACC = 32
    TA = 44
    TB = 47
    DT = 48
    T = 50
    k("s_lshl_b32 s3, s2, 8")
    k("v_lshrrev_b32 v1, 4, v0")
    k("v_lshl_add_u32 v1, v1, 3, s3")
    k("s_lshr_b32 s4, s2, 1")
    k("s_lshl_b32 s4, s4, 2")
    k("s_waitcnt lgkmcnt(0)")
    k("s_load_dword s5, s[30:31], s4")
    for i in range(6):
        k(f"global_load_dwordx2 {v(PRM + 2 * i, 2)}, v1, {s(18 + 2 * i, 2)}")
    k.srd(8, 40, WS_KR, 512 * KR_CH)
    k("v_and_b32 v2, 15, v0")
    k("v_lshrrev_b32 v3, 3, v2")
    k("v_and_b32 v4, 7, v2")
    k(f"v_lshl_add_u32 {v(TA)}, v3, 7, v4")
    k("v_lshrrev_b32 v5, 2, v2")
    k("v_and_b32 v6, 3, v2")
    k("v_lshlrev_b32 v6, 1, v6")
    k("v_lshl_add_u32 v5, v5, 7, v6")
    k("v_add_u32 v5, 256, v5")
    k("v_lshrrev_b32 v6, 1, v4")
    k("v_and_b32 v7, 1, v2")
    k("v_lshlrev_b32 v7, 2, v7")
    k("v_lshl_add_u32 v6, v6, 7, v7")
    k("v_add_u32 v6, 512, v6")
    k("v_cmp_gt_u32 vcc, 8, v2")
    k(f"v_cndmask_b32 {v(TA + 1)}, v6, v5, vcc")
    k("v_min_u32 v5, 8, v2")
    k("v_lshlrev_b32 v5, 7, v5")
    k(f"v_add_u32 {v(TA + 2)}, 0x400, v5")
    k(f"v_lshlrev_b32 {v(TB)}, 3, v2")
    for r in (TA, TA + 1, TA + 2, TB):
        k(f"v_cvt_f32_u32 {v(r)}, {v(r)}")
    for r in range(12):
        k(f"v_mov_b32 {v(ACC + r)}, 0")
    k("s_waitcnt lgkmcnt(0)")
    k("s_and_b32 s6, s2, 1")
    k("s_lshl_b32 s6, s6, 4")
    k("s_lshr_b32 s5, s5, s6")
    k("s_lshl_b32 s5, s5, 16")
    k(f"v_mov_b32 {v(T)}, s5")
    k(f"v_mul_f32 {v(T + 1)}, {hx(LOG2E_HI)}, {v(T)}")
    k(f"v_mov_b32 {v(T + 2)}, {hx(LOG2E_HI)}")
    k(f"v_fma_f32 {v(T + 2)}, {v(T)}, {v(T + 2)}, -{v(T + 1)}")
    k(f"v_fmac_f32 {v(T + 2)}, {hx(LOG2E_LO)}, {v(T)}")
    k(f"v_exp_f32 {v(T + 3)}, {v(T + 1)}")
    k(f"v_mul_f32 {v(T + 2)}, {hx(LN2)}, {v(T + 2)}")
    k(f"v_fma_f32 {v(T + 3)}, {v(T + 3)}, {v(T + 2)}, {v(T + 3)}")
    k(f"v_cvt_pk_bf16_f32 {v(T + 3)}, {v(T + 3)}, {v(T + 3)}")
    k(f"v_lshlrev_b32 {v(DT)}, 16, {v(T + 3)}")
    k("s_waitcnt vmcnt(0)")
    k.stamp()
    U = T
    A2, B2, CR, CI = T + 6, T + 7, T + 8, T + 9
    W = T + 10
    for j in range(4):
        for i in range(6):
            src = v(PRM + 2 * i + (j >> 1))
            if j & 1:
                k(f"v_and_b32 {v(U + i)}, 0xffff0000, {src}")
            else:
                k(f"v_lshlrev_b32 {v(U + i)}, 16, {src}")
        k(f"v_mul_f32 {v(A2)}, {v(DT)}, {v(U + 0)}")
        k(f"v_mul_f32 {v(B2)}, {v(DT)}, {v(U + 1)}")
        k(f"v_mul_f32 {v(U + 2)}, {v(DT)}, {v(U + 2)}")
        k(f"v_mul_f32 {v(U + 3)}, {v(DT)}, {v(U + 3)}")
        k(f"v_mul_f32 {v(A2)}, {hx(LOG2E)}, {v(A2)}")
        k(f"v_mul_f32 {v(B2)}, {hx(INV2PI)}, {v(B2)}")
        k(f"v_mul_f32 {v(CR)}, {v(U + 4)}, {v(U + 2)}")
        k(f"v_mul_f32 {v(CI)}, {v(U + 4)}, {v(U + 3)}")
        k(f"v_fma_f32 {v(CR)}, -{v(U + 5)}, {v(U + 3)}, {v(CR)}")
        k(f"v_fmac_f32 {v(CI)}, {v(U + 5)}, {v(U + 2)}")
        tt = [TA, TA + 1, TA + 2, TB]
        for x in range(4):
            k(f"v_mul_f32 {v(W + 4 * x)}, {v(A2)}, {v(tt[x])}")
            k(f"v_mul_f32 {v(W + 4 * x + 1)}, {v(B2)}, {v(tt[x])}")
        for x in range(4):
            k(f"v_fract_f32 {v(W + 4 * x + 1)}, {v(W + 4 * x + 1)}")
        for x in range(4):
            k(f"v_exp_f32 {v(W + 4 * x)}, {v(W + 4 * x)}")
            k(f"v_cos_f32 {v(W + 4 * x + 2)}, {v(W + 4 * x + 1)}")
            k(f"v_sin_f32 {v(W + 4 * x + 3)}, {v(W + 4 * x + 1)}")
        for x in range(3):
            k(f"v_mul_f32 {v(W + 4 * x + 2)}, {v(W + 4 * x)}, {v(W + 4 * x + 2)}")
            k(f"v_mul_f32_e64 {v(W + 4 * x + 3)}, -{v(W + 4 * x)}, {v(W + 4 * x + 3)}")
        x = 3
        k(f"v_mul_f32 {v(W + 14)}, {v(W + 12)}, {v(W + 14)}")
        k(f"v_mul_f32 {v(W + 15)}, {v(W + 12)}, {v(W + 15)}")
        k(f"v_mul_f32 {v(W + 12)}, {v(CR)}, {v(W + 14)}")
        k(f"v_mul_f32 {v(W + 13)}, {v(CR)}, {v(W + 15)}")
        k(f"v_fma_f32 {v(W + 12)}, -{v(CI)}, {v(W + 15)}, {v(W + 12)}")
        k(f"v_fmac_f32 {v(W + 13)}, {v(CI)}, {v(W + 14)}")
        for x in range(3):
            k(f"v_mfma_f32_16x16x4_f32 {v(ACC + 4 * x, 4)}, {v(W + 4 * x + 2)}, {v(W + 12)}, {v(ACC + 4 * x, 4)}")
            k(f"v_mfma_f32_16x16x4_f32 {v(ACC + 4 * x, 4)}, {v(W + 4 * x + 3)}, {v(W + 13)}, {v(ACC + 4 * x, 4)}")
    k.stamp()
    k("v_lshrrev_b32 v3, 6, v0")
    k("v_bfe_u32 v4, v0, 4, 2")
    k("v_mul_u32_u24 v3, 3072, v3")
    k("v_lshl_add_u32 v3, v4, 8, v3")
    k("v_lshl_add_u32 v3, v2, 2, v3")
    for Tt in range(3):
        for kk in range(4):
            k(f"ds_write_b32 v3, {v(ACC + 4 * Tt + kk)} offset:{(16 * Tt + kk) * 64}")
    k("s_waitcnt lgkmcnt(0)")
    k("s_barrier")
    FT = 24576
    k("v_lshlrev_b32 v3, 2, v0")
    k("v_min_u32 v4, 255, v0")
    k("v_lshlrev_b32 v4, 2, v4")
    for w in range(8):
        k(f"ds_read_b32 {v(T + w)}, v3 offset:{w * 3072}")
    for w in range(6):
        k(f"ds_read_b32 {v(T + 8 + w)}, v4 offset:{w * 3072 + 2048}")
    k("s_waitcnt lgkmcnt(6)")
    for w in range(6, 8):
        k(f"ds_read_b32 {v(T + 8 + w)}, v4 offset:{w * 3072 + 2048}")
    k("v_mov_b32 v4, 0")
    k(f"v_mov_b32 v5, {FT + 1024 * 4}")
    k("ds_write_b32 v5, v4")
    k("s_waitcnt lgkmcnt(0)")
    for e in range(2):
        b = T + 8 * e
        for w in range(0, 8, 2):
            k(f"v_add_f32 {v(b + w)}, {v(b + w)}, {v(b + w + 1)}")
        k(f"v_add_f32 {v(b)}, {v(b)}, {v(b + 2)}")
        k(f"v_add_f32 {v(b + 4)}, {v(b + 4)}, {v(b + 6)}")
        k(f"v_add_f32 {v(b)}, {v(b)}, {v(b + 4)}")
        k(f"ds_write_b32 v3, {v(b)} offset:{FT + e * 2048}")
    k(f"v_cmp_gt_u32 vcc, {641 - 512}, v0")
    k(f"v_cndmask_b32 {v(T + 8)}, 0, {v(T + 8)}, vcc")
    k(f"v_max_f32_e64 {v(T + 1)}, abs({v(T)}), abs({v(T + 8)})")
    for mod in ("row_shr:1", "row_shr:2", "row_shr:4", "row_shr:8"):
        k(f"v_max_f32_dpp {v(T + 1)}, {v(T + 1)}, {v(T + 1)} {mod} row_mask:0xf bank_mask:0xf bound_ctrl:0")
    k(f"v_max_f32_dpp {v(T + 1)}, {v(T + 1)}, {v(T + 1)} row_bcast:15 row_mask:0xa bank_mask:0xf")
    k(f"v_max_f32_dpp {v(T + 1)}, {v(T + 1)}, {v(T + 1)} row_bcast:31 row_mask:0xc bank_mask:0xf")
    MXO = FT + 1028 * 4
    k("v_lshrrev_b32 v4, 6, v0")
    k("v_lshlrev_b32 v4, 2, v4")
    k("v_and_b32 v5, 63, v0")
    k("v_cmp_eq_u32 vcc, 63, v5")
    k("s_and_saveexec_b64 s[12:13], vcc")
    k(f"ds_write_b32 v4, {v(T + 1)} offset:{MXO}")
    k("s_mov_b64 exec, s[12:13]")
    k("s_waitcnt lgkmcnt(0)")
    k("s_barrier")
    k("v_mov_b32 v4, 0")
    k(f"ds_read_b128 {v(T + 2, 4)}, v4 offset:{MXO}")
    k(f"ds_read_b128 {v(T + 6, 4)}, v4 offset:{MXO + 16}")
    k("s_waitcnt lgkmcnt(0)")
    k(f"v_max3_f32 {v(T)}, {v(T + 2)}, {v(T + 3)}, {v(T + 4)}")
    k(f"v_max3_f32 {v(T)}, {v(T)}, {v(T + 5)}, {v(T + 6)}")
    k(f"v_max3_f32 {v(T)}, {v(T)}, {v(T + 7)}, {v(T + 8)}")
    k(f"v_max_f32 {v(T)}, {v(T)}, {v(T + 9)}")
    k(f"v_frexp_exp_i32_f32 {v(T)}, {v(T)}")
    ESC = 48
    k(f"v_sub_u32 {v(ESC)}, 15, {v(T)}")
    k(f"v_sub_u32 {v(T + 1)}, 0, {v(ESC)}")
    k(f"v_ldexp_f32 {v(T + 1)}, 1.0, {v(T + 1)}")
    k(f"s_mul_i32 s4, s2, {KR_CH}")
    k(f"v_mov_b32 v4, {KR_PART}")
    k("v_cmp_eq_u32 vcc, 0, v0")
    k("s_and_saveexec_b64 s[12:13], vcc")
    k(f"buffer_store_dword {v(T + 1)}, v4, s[8:11], s4 offen")
    k("s_mov_b64 exec, s[12:13]")

    k.stamp()

    def expand(chunk_add):
        LG = 8
        TT = 16
        IX = 24
        X1, X2, X3 = 32, 33, 34
        k("v_lshlrev_b32 v3, 3, v0")
        for jj in range(8):
            k(f"v_sub_u32 {v(LG + jj)}, {P0 - 8 * chunk_add - jj}, v3")
            k(f"v_cvt_f32_u32 {v(TT + jj)}, {v(LG + jj)}")
        for jj in range(0, 8, 2):
            k(f"v_cvt_pk_bf16_f32 {v(X1)}, {v(TT + jj)}, {v(TT + jj + 1)}")
            k(f"v_lshlrev_b32 {v(TT + jj)}, 16, {v(X1)}")
            k(f"v_and_b32 {v(TT + jj + 1)}, 0xffff0000, {v(X1)}")
        for jj in range(8):
            t = v(TT + jj)
            k(f"v_cvt_u32_f32 {t}, {t}")
            k(f"v_or_b32 {v(X1)}, 1, {t}")
            k(f"v_ffbh_u32 {v(X1)}, {v(X1)}")
            k(f"v_sub_u32 {v(X1)}, 24, {v(X1)}")
            k(f"v_med3_i32 {v(X1)}, {v(X1)}, 0, 3")
            k(f"v_lshrrev_b32 {v(X2)}, 7, {t}")
            k(f"v_sub_u32 {v(X3)}, 3, {v(X1)}")
            k(f"v_lshlrev_b32 {v(X2)}, {v(X3)}, {v(X2)}")
            k(f"v_and_b32 {v(X3)}, 7, {t}")
            k(f"v_lshrrev_b32 {v(X3)}, {v(X1)}, {v(X3)}")
            k(f"v_lshl_add_u32 {v(X2)}, {v(X1)}, 3, {v(X2)}")
            k(f"v_add_u32 {v(X2)}, {v(X2)}, {v(X3)}")
            k(f"v_bfe_u32 {v(X3)}, {t}, 3, 4")
            k(f"v_lshl_add_u32 {v(X2)}, {v(X2)}, 4, {v(X3)}")
            k(f"v_cmp_gt_u32 vcc, 0x800, {v(LG + jj)}")
            k(f"v_mov_b32 {v(X3)}, 0x400")
            k(f"v_cndmask_b32 {v(X2)}, {v(X3)}, {v(X2)}, vcc")
            k(f"v_lshlrev_b32 {v(IX + jj)}, 2, {v(X2)}")
            k(f"ds_read_b32 {v(TT + jj)}, {v(IX + jj)} offset:{FT}")
        k("s_waitcnt lgkmcnt(0)")
        HI = 36
        for jj in range(8):
            k(f"v_ldexp_f32 {v(TT + jj)}, {v(TT + jj)}, {v(ESC)}")
        for jj in range(0, 8, 2):
            k(f"v_cvt_pk_f16_f32 {v(HI + jj // 2)}, {v(TT + jj)}, {v(TT + jj + 1)}")
        k("v_lshlrev_b32 v3, 4, v0")
        if chunk_add:
            k(f"v_add_u32 v3, {chunk_add * 16}, v3")
        k(f"buffer_store_dwordx4 {v(HI, 4)}, v3, s[8:11], s4 offen")

    k("v_cmp_gt_u32 vcc, 288, v0")
    k("s_and_saveexec_b64 s[12:13], vcc")
    if not k.diag:
        k("s_cbranch_execz prep_done")
    k.fence(4)
    expand(0)
    k.stamp()
    k.stamp(real=True)
    k.dump_stamps(40, WS_DIAG)
    k("s_mov_b64 exec, -1")
    k.tl_end(40, WS_DIAG)
    k("s_endpgm")

    k.label("prep_not_kgen")
    k.fence(2)
    k("v_readfirstlane_b32 s3, v0")
    k("s_cmp_ge_u32 s3, 256")
    k("s_cbranch_scc1 prep_done")
    k("s_setprio 3")
    if os.environ.get("PFC", "1") == "1":
        k.prefetch_code("conv2_kernel", 28672, 60, 42)
    k(f"s_cmp_ge_u32 s2, {N_KGEN + N_X0}")
    k("s_cbranch_scc1 prep_not_x0")

    RS = 1056

    def transpose32(is_x0):
        src = 16 if is_x0 else 36
        DAT = 8
        k("v_lshlrev_b32 v1, 4, v0")
        k("v_add_u32 v1, s4, v1")
        for j in range(8):
            if j:
                k(f"v_add_u32 v1, 0x1000, v1")
            k(f"global_load_dwordx4 {v(DAT + 4 * j, 4)}, v1, {s(src, 2)}")
        k("v_lshrrev_b32 v2, 6, v0")
        k("v_and_b32 v3, 63, v0")
        k(f"v_mul_u32_u24 v4, {RS}, v2")
        k("v_lshl_add_u32 v4, v3, 4, v4")
        if is_x0:
            SS = 40
            k(f"s_mov_b32 s7, 0x{ONES_BF16:08x}")
        for j in range(8):
            k(f"s_waitcnt vmcnt({7 - j})")
            k(f"ds_write_b128 v4, {v(DAT + 4 * j, 4)} offset:{4 * j * RS}")
            if is_x0:
                k(f"v_mov_b32 {v(SS + 2 * j)}, 0")
                k(f"v_mov_b32 {v(SS + 2 * j + 1)}, 0")
                for q in range(4):
                    k(f"v_dot2_f32_bf16 {v(SS + 2 * j)}, {v(DAT + 4 * j + q)}, s7, {v(SS + 2 * j)}")
                    k(f"v_dot2_f32_bf16 {v(SS + 2 * j + 1)}, {v(DAT + 4 * j + q)}, {v(DAT + 4 * j + q)}, {v(SS + 2 * j + 1)}")
        if is_x0:
            for mod in ("row_shr:1", "row_shr:2", "row_shr:4", "row_shr:8"):
                for r in range(16):
                    k(f"v_add_f32_dpp {v(SS + r)}, {v(SS + r)}, {v(SS + r)} {mod} row_mask:0xf bank_mask:0xf bound_ctrl:0")
            for r in range(16):
                k(f"v_add_f32_dpp {v(SS + r)}, {v(SS + r)}, {v(SS + r)} row_bcast:15 row_mask:0xa bank_mask:0xf")
            for r in range(16):
                k(f"v_add_f32_dpp {v(SS + r)}, {v(SS + r)}, {v(SS + r)} row_bcast:31 row_mask:0xc bank_mask:0xf")
            k("v_lshlrev_b32 v5, 3, v2")
            k("v_add_u32 v5, s5, v5")
            k("v_cmp_eq_u32 vcc, 63, v3")
            k("s_and_saveexec_b64 s[14:15], vcc")
            for j in range(8):
                k(f"buffer_store_dwordx2 {v(SS + 2 * j, 2)}, v5, s[44:47], 0 offen offset:{32 * j}")
            k("s_mov_b64 exec, s[14:15]")
            k("v_mov_b32 v56, 0")
            k("v_mov_b32 v57, 0")
            k("v_mov_b32 v58, 0")
            k("v_mov_b32 v59, 0")
            k("v_lshlrev_b32 v5, 4, v0")
            k("v_add_u32 v5, s5, v5")
            k("v_cmp_gt_u32 vcc, 16, v0")
            k("s_and_saveexec_b64 s[14:15], vcc")
            k("buffer_store_dwordx4 v[56:59], v5, s[48:51], 0 offen")
            k("s_mov_b64 exec, s[14:15]")
        k("s_waitcnt lgkmcnt(0)")
        k("s_barrier")
        k("v_and_b32 v5, 15, v0")
        k("v_bfe_u32 v6, v0, 4, 2")
        k("v_lshrrev_b32 v7, 2, v5")
        k("v_lshl_add_u32 v7, v6, 3, v7")
        k(f"v_mul_u32_u24 v7, {RS}, v7")
        k("v_and_b32 v4, 3, v0")
        k("v_lshl_add_u32 v7, v4, 3, v7")
        k("v_lshl_add_u32 v7, v2, 8, v7")
        for it in range(8):
            k(f"ds_read_b64_tr_b16 {v(DAT + 4 * it, 2)}, v7 offset:{32 * it}")
            k(f"ds_read_b64_tr_b16 {v(DAT + 4 * it + 2, 2)}, v7 offset:{32 * it + 4 * RS}")
        if is_x0:
            k("v_lshl_add_u32 v4, v2, 7, v5")
            k("v_lshlrev_b32 v4, 8, v4")
            k("v_lshl_add_u32 v4, v6, 4, v4")
            k("v_add_u32 v4, s6, v4")
            step = 16 * 256
        else:
            k(f"v_mul_u32_u24 v4, {8 * NKS2 * 1024}, v2")
            k("v_lshl_add_u32 v4, v3, 4, v4")
            k("v_add_u32 v4, s6, v4")
            step = NKS2 * 1024
        for it in range(8):
            k(f"s_waitcnt lgkmcnt({14 - 2 * it})")
            k(f"buffer_store_dwordx4 {v(DAT + 4 * it, 4)}, v4, s[8:11], 0 offen")
            if it < 7:
                k(f"v_add_u32 v4, {step}, v4")
        if k.diag:
            k.nstamp = 2
            for _ in range(4):
                k.stamp()
            k.stamp(real=True)
            k.dump_stamps(40, WS_DIAG)
        k.tl_end(40, WS_DIAG)
        k("s_endpgm")

    k("s_waitcnt lgkmcnt(0)")
    k(f"s_sub_u32 s3, s2, {N_KGEN}")
    k("s_lshl_b32 s4, s3, 15")
    k("s_lshl_b32 s5, s3, 8")
    k("s_lshr_b32 s6, s3, 2")
    k("s_lshl_b32 s6, s6, 17")
    k("s_and_b32 s7, s3, 3")
    k("s_lshl_b32 s7, s7, 6")
    k("s_add_u32 s6, s6, s7")
    k.srd(8, 40, WS_X0T, XT_BYTES)
    k.srd(44, 40, WS_ST0, ST_BYTES)
    k.srd(48, 40, WS_ST2, ST_BYTES)
    transpose32(True)

    k.label("prep_not_x0")
    k.fence(2)
    k(f"s_cmp_ge_u32 s2, {N_KGEN + N_X0 + N_W1}")
    k("s_cbranch_scc1 prep_w2")

    k("s_waitcnt lgkmcnt(0)")
    k(f"s_sub_u32 s3, s2, {N_KGEN + N_X0}")
    k("s_lshr_b32 s4, s3, 1")
    k("s_and_b32 s5, s3, 1")
    wbytes = D * F * 2
    k("s_cmp_ge_u32 s4, 43")
    k(f"s_cselect_b32 s6, 0, {wbytes}")
    k.srd(8, 32, 0, 0)
    k("s_mov_b32 s10, s6")
    k.srd(12, 34, 0, 0)
    k("s_mov_b32 s14, s6")
    k.srd(44, 40, WS_W1, W1_BYTES)
    k.srd(48, 40, WS_CS, 2 * CS_HALF)
    RS1 = 144
    k("s_cmp_lg_u32 s4, 43")
    k("s_cbranch_scc1 prep_w1_noones")
    for q in range(4):
        k(f"v_mov_b32 {v(8 + q)}, 0x{ONES_BF16:08x}")
    k("v_lshlrev_b32 v1, 4, v0")
    k("s_lshl_b32 s6, s5, 13")
    k(f"s_add_u32 s6, s6, {NPT * 16384}")
    k("buffer_store_dwordx4 v[8:11], v1, s[44:47], s6 offen")
    k("s_add_u32 s6, s6, 4096")
    k("buffer_store_dwordx4 v[8:11], v1, s[44:47], s6 offen")
    k("s_waitcnt vmcnt(0)")
    k.label("prep_w1_noones")
    k.fence(2)
    k(f"s_mul_i32 s6, s5, {256 * F * 2}")
    k("s_lshl_b32 s7, s4, 6")
    k("s_add_u32 s6, s6, s7")
    k("v_lshrrev_b32 v2, 2, v0")
    k("v_and_b32 v3, 3, v0")
    k(f"v_mul_u32_u24 v1, {F * 2}, v2")
    k("v_lshl_add_u32 v1, v3, 4, v1")
    GA, UA, TI = 8, 24, 40
    for j in range(4):
        if j:
            k(f"s_add_u32 s6, s6, {64 * F * 2}")
        k(f"buffer_load_dwordx4 {v(GA + 4 * j, 4)}, v1, s[8:11], s6 offen")
        k(f"buffer_load_dwordx4 {v(UA + 4 * j, 4)}, v1, s[12:15], s6 offen")
    k(f"v_mul_u32_u24 v4, {RS1}, v2")
    k("v_lshl_add_u32 v4, v3, 5, v4")
    for j in range(4):
        k(f"s_waitcnt vmcnt({6 - 2 * j})")
        for q in range(4):
            k(f"v_mov_b32 {v(TI + 8 * (j & 1) + 2 * q)}, {v(GA + 4 * j + q)}")
            k(f"v_mov_b32 {v(TI + 8 * (j & 1) + 2 * q + 1)}, {v(UA + 4 * j + q)}")
        k(f"ds_write_b128 v4, {v(TI + 8 * (j & 1), 4)} offset:{64 * j * RS1}")
        k(f"ds_write_b128 v4, {v(TI + 8 * (j & 1) + 4, 4)} offset:{64 * j * RS1 + 16}")
    k("s_waitcnt lgkmcnt(0)")
    k("s_barrier")
    k("v_lshrrev_b32 v2, 6, v0")
    k("v_and_b32 v5, 15, v0")
    k("v_bfe_u32 v6, v0, 4, 2")
    k("v_lshrrev_b32 v7, 2, v5")
    k("v_lshl_add_u32 v7, v6, 3, v7")
    k(f"v_mul_u32_u24 v7, {RS1}, v7")
    k("v_lshl_add_u32 v7, v3, 3, v7")
    k("v_lshl_add_u32 v7, v2, 5, v7")
    for ks in range(8):
        k(f"ds_read_b64_tr_b16 {v(GA + 4 * ks, 2)}, v7 offset:{32 * ks * RS1}")
        k(f"ds_read_b64_tr_b16 {v(GA + 4 * ks + 2, 2)}, v7 offset:{32 * ks * RS1 + 4 * RS1}")
    k("s_lshl_b32 s6, s4, 16")
    k("s_lshl_b32 s7, s5, 13")
    k("s_add_u32 s6, s6, s7")
    k("v_and_b32 v3, 63, v0")
    k("v_lshlrev_b32 v4, 14, v2")
    k("v_lshl_add_u32 v4, v3, 4, v4")
    k("v_add_u32 v1, 0x1000, v4")
    k(f"s_mov_b32 s7, 0x{ONES_BF16:08x}")
    k(f"v_mov_b32 {v(TI)}, 0")
    for ks in range(8):
        k(f"s_waitcnt lgkmcnt({14 - 2 * ks})")
        base = "v4" if ks < 4 else "v1"
        k(f"buffer_store_dwordx4 {v(GA + 4 * ks, 4)}, {base}, s[44:47], s6 offen offset:{(ks & 3) * 1024}")
        for q in range(4):
            k(f"v_dot2_f32_bf16 {v(TI)}, {v(GA + 4 * ks + q)}, s7, {v(TI)}")
    row4_sum(k, TI, TI + 1)
    k(f"s_mul_i32 s6, s5, {CS_HALF}")
    k("s_lshl_b32 s7, s4, 8")
    k("s_add_u32 s6, s6, s7")
    k("v_lshlrev_b32 v4, 6, v2")
    k("v_lshl_add_u32 v4, v5, 2, v4")
    k("v_cmp_gt_u32 vcc, 16, v3")
    k("s_and_saveexec_b64 s[14:15], vcc")
    k(f"buffer_store_dword {v(TI)}, v4, s[48:51], s6 offen")
    if k.diag:
        k.nstamp = 2
        for _ in range(4):
            k.stamp()
        k.stamp(real=True)
        k.dump_stamps(40, WS_DIAG)
    k.tl_end(40, WS_DIAG)
    k("s_endpgm")

    k.label("prep_w2")
    k.fence(2)
    k("s_waitcnt lgkmcnt(0)")
    k(f"s_sub_u32 s3, s2, {N_KGEN + N_X0 + N_W1}")
    k("s_lshl_b32 s4, s3, 15")
    k("s_lshl_b32 s6, s3, 10")
    k.srd(8, 40, WS_W2, W2_BYTES)
    transpose32(False)

    k.label("prep_done")
    k("s_endpgm")
    return k


def build(kernels, launches, path):
    hdr = open("interleave_layers__ssm_conv_s4__swiglu_ffn__prompt.s.ref").read().split("\n")
    out = []
    for line in hdr:
        if line.startswith("; Override") or line.startswith("; grid=") or "@launch" in line:
            continue
        if not line.startswith(";"):
            break
        out.append(line)
    for (name, grid, block, lds) in launches:
        out.append(f"; @launch kernel={name} grid=({grid},1,1) block=({block},1,1) lds={lds}")
    out.append('.amdgcn_target "amdgcn-amd-amdhsa--gfx950"')
    out.append(".text")
    for k in kernels:
        out.append(k.text())
    out.append('.section .rodata,"a"')
    for k in kernels:
        for dsc in k.descriptors():
            out.append(".p2align 6")
            out.append(dsc)
    open(path, "w").write("\n".join(out))


if __name__ == "__main__":
    kernels = [gen_prep()]
    launches = [("prep_kernel", PREP_GRID, 512, PREP_LDS)]
    try:
        import gen2
        gen2.extend(kernels, launches)
    except ImportError:
        pass
    path = sys.argv[1] if len(sys.argv) > 1 else "interleave_layers__ssm_conv_s4__swiglu_ffn__prompt.s"
    build(kernels, launches, path)
    for k in kernels:
        print(k.name, "vgpr", k.maxv + 1, "agpr", k.maxa + 1, "sgpr", k.maxs + 1, "lines", len(k.lines))
```

```python
from asmlib import Kernel, a, s, v
from gen import *


class Cnt:
    def __init__(self, k, name, maxn):
        self.k, self.name, self.maxn = k, name, maxn
        self.q = []

    def issue(self, tag):
        if len(self.q) >= self.maxn:
            self.wait_n(self.maxn - 1)
        self.q.append(tag)

    def wait_n(self, n):
        if len(self.q) > n:
            self.k(f"s_waitcnt {self.name}({n})")
            self.q = self.q[len(self.q) - n:] if n else []

    def wait(self, tag):
        if tag in self.q:
            i = max(j for j, t in enumerate(self.q) if t == tag)
            self.wait_n(len(self.q) - 1 - i)

    def drain(self):
        self.wait_n(0)


def unpack(k, dst, src, hi):
    if hi:
        k(f"v_and_b32 {v(dst)}, 0xffff0000, {v(src)}")
    else:
        k(f"v_lshlrev_b32 {v(dst)}, 16, {v(src)}")


def round_pairs(k, regs, tmp):
    for i in range(0, len(regs), 2):
        k(f"v_cvt_pk_bf16_f32 {v(tmp)}, {v(regs[i])}, {v(regs[i + 1])}")
        unpack(k, regs[i], tmp, 0)
        unpack(k, regs[i + 1], tmp, 1)


def ln_stats(k, S, n, MB, RI, tmp):
    for j in range(n):
        k(f"v_mul_f32 {v(S + 2 * j)}, {hx(1.0 / D)}, {v(S + 2 * j)}")
        k(f"v_mul_f32 {v(S + 2 * j + 1)}, {hx(1.0 / D)}, {v(S + 2 * j + 1)}")
        k(f"v_fma_f32 {v(S + 2 * j + 1)}, -{v(S + 2 * j)}, {v(S + 2 * j)}, {v(S + 2 * j + 1)}")
        k(f"v_max_f32 {v(S + 2 * j + 1)}, 0, {v(S + 2 * j + 1)}")
        k(f"v_cvt_pk_bf16_f32 {v(tmp)}, {v(S + 2 * j)}, {v(S + 2 * j + 1)}")
        unpack(k, MB + j, tmp, 0)
        unpack(k, RI + j, tmp, 1)
        k(f"v_add_f32 {v(RI + j)}, {hx(1e-5)}, {v(RI + j)}")
    round_pairs(k, [RI + j for j in range(n)], tmp)
    for j in range(n):
        k(f"v_sqrt_f32 {v(RI + j)}, {v(RI + j)}")
    round_pairs(k, [RI + j for j in range(n)], tmp)
    for j in range(n):
        k(f"v_rcp_f32 {v(RI + j)}, {v(RI + j)}")


KOFF = 512
UOFF = KOFF + KR_CH
UST = 4640
CONV_LDS = UOFF + 8 * UST


def gen_conv(variants):
    name = "conv"
    k = Kernel(name)
    k.stubs = [(nm, [f"s_movk_i32 s35, 0x{xi >> 16:x}", f"s_movk_i32 s36, 0x{st >> 16:x}", f"s_movk_i32 s37, 0x{xo >> 16:x}"])
               for nm, xi, st, xo in variants]
    k.maxs = 37
    k.tl = os.environ.get('TL', '') == '1'
    if k.tl:
        for (nm, lines), li in zip(k.stubs, (3 if os.environ.get('FUSE', '1') == '1' else 4, 1)):
            lines.append(f"s_mov_b32 s57, {li}")
    k.tl_start()
    ws_xin, ws_st, ws_xout = "s35", "s36", "s37"
    k.diag = DIAG == name
    done = f"{name}_done"
    k("s_load_dwordx2 s[4:5], s[0:1], 120")
    k("s_load_dwordx2 s[6:7], s[0:1], 64")
    k(f"s_cmp_ge_u32 s2, {D}")
    k(f"s_cbranch_scc1 {done}")
    k.stamp(real=True)
    k.stamp()
    for r in (35, 36, 37):
        k(f"s_lshl_b32 s{r}, s{r}, 16")
    if os.environ.get("CPRIO", "1") == "1":
        k("s_cmp_ge_u32 s2, 256")
        k(f"s_cbranch_scc1 {name}_lowprio")
        k("s_setprio 2")
        k.label(f"{name}_lowprio")
    X, H = 4, 8
    S = 16
    MB, RI = 32, 40
    XF = 48
    TMP = 56
    XO = 136
    HB = 140
    k("v_lshlrev_b32 v1, 4, v0")
    k("v_lshlrev_b32 v2, 6, v0")
    k("v_and_b32 v3, 63, v0")
    k("v_lshlrev_b32 v3, 4, v3")
    k("v_readfirstlane_b32 s24, v0")
    k("s_lshr_b32 s24, s24, 6")
    k("s_lshl_b32 s26, s2, 8")
    k(f"s_mul_i32 s27, s2, {KR_CH}")
    k("s_lshr_b32 s28, s2, 1")
    k("s_lshl_b32 s28, s28, 2")
    k("s_waitcnt lgkmcnt(0)")
    k("s_load_dword s29, s[6:7], s28")
    k.srd(8, 4, ws_xin, XT_BYTES)
    k.srd(12, 4, ws_st, ST_BYTES)
    k(f"s_add_u32 s30, s27, 0x{WS_KR:x}")
    k("s_add_u32 s16, s4, s30")
    k("s_addc_u32 s17, s5, 0")
    k(f"s_mov_b32 s18, {KR_CH}")
    k("s_mov_b32 s19, 0x00020000")
    k.srd(20, 4, ws_xout, XT_BYTES)
    k("s_mov_b32 s33, s26")
    k(f"s_load_dword s32, s[16:17], {KR_PART}")
    k(f"v_lshrrev_b32 {v(XO)}, 4, v0")
    k(f"v_lshlrev_b32 {v(XO)}, 17, {v(XO)}")
    k("v_and_b32 v1, 15, v0")
    k(f"v_lshl_add_u32 {v(XO)}, v1, 4, {v(XO)}")
    k(f"buffer_load_dwordx4 {v(X, 4)}, {v(XO)}, s[8:11], s33 offen")
    for j in range(4):
        k(f"buffer_load_dwordx4 {v(S + 4 * j, 4)}, v2, s[12:15], 0 offen offset:{16 * j}")
    k("s_lshl_b32 s25, s24, 10")
    k(f"s_add_u32 m0, s25, {KOFF}")
    k("buffer_load_dwordx4 v3, s[16:19], s25 offen lds")
    k("s_cmp_lg_u32 s24, 0")
    k(f"s_cbranch_scc1 {name}_nok8")
    k("s_mov_b32 s25, 4096")
    k(f"s_mov_b32 m0, {KOFF + 4096}")
    k("buffer_load_dwordx4 v3, s[16:19], s25 offen lds")
    k.label(f"{name}_nok8")
    for r in range(4):
        k(f"v_mov_b32 {v(TMP + r)}, 0")
    k("v_lshrrev_b32 v1, 5, v0")
    k("v_and_b32 v2, 31, v0")
    k(f"v_mul_u32_u24 v1, {UST}, v1")
    k("v_cmp_eq_u32 vcc, 20, v2")
    k("v_mov_b32 v3, 276")
    k("v_cndmask_b32 v3, v2, v3, vcc")
    k("v_lshl_add_u32 v1, v3, 4, v1")
    k("v_cmp_gt_u32 vcc, 21, v2")
    k("s_and_saveexec_b64 s[30:31], vcc")
    k(f"ds_write_b128 v1, {v(TMP, 4)} offset:{UOFF}")
    k("s_mov_b64 exec, s[30:31]")
    k("s_waitcnt vmcnt(1)")
    k.stamp()
    ln_stats(k, S, 8, MB, RI, TMP + 4)
    for j in range(8):
        unpack(k, XF + j, X + j // 2, j & 1)
        k(f"v_sub_f32 {v(XF + j)}, {v(XF + j)}, {v(MB + j)}")
    round_pairs(k, [XF + j for j in range(8)], TMP + 4)
    for j in range(8):
        k(f"v_mul_f32 {v(XF + j)}, {v(XF + j)}, {v(RI + j)}")
    for j in range(4):
        k(f"v_cvt_pk_bf16_f32 {v(HB + j)}, {v(XF + 2 * j)}, {v(XF + 2 * j + 1)}")
    for j in range(8):
        unpack(k, XF + j, HB + j // 2, j & 1)
    for j in range(4):
        k(f"v_cvt_pk_f16_f32 {v(H + j)}, {v(XF + 2 * j)}, {v(XF + 2 * j + 1)}")
    k("v_lshlrev_b32 v1, 4, v0")
    k(f"ds_write_b128 v1, {v(H, 4)} offset:{UOFF + 320}")
    k("s_waitcnt lgkmcnt(0)")
    k("s_barrier")
    k.stamp()
    k(f"ds_read_b128 {v(H + 4, 4)}, v1 offset:{UOFF + 336}")
    k("v_and_b32 v2, 7, v0")
    k("v_lshrrev_b32 v3, 3, v0")
    k(f"v_lshlrev_b32 {v(TMP)}, 1, v2")
    k(f"v_mul_u32_u24 {v(TMP + 1)}, {UST - 2}, v3")
    k(f"v_add_u32 {v(TMP + 1)}, {v(TMP + 1)}, {v(TMP)}")
    k("v_cmp_lt_u32 vcc, v2, v3")
    k("v_cmp_gt_u32 s[30:31], 64, v0")
    k("s_and_b64 vcc, vcc, s[30:31]")
    k("s_and_saveexec_b64 s[30:31], vcc")
    k(f"ds_read_u16 {v(TMP + 2)}, {v(TMP)} offset:{UOFF + 320}")
    k("s_waitcnt lgkmcnt(0)")
    k(f"ds_write_b16 {v(TMP + 1)}, {v(TMP + 2)} offset:{UOFF + 19 * 16 + 16}")
    k("s_mov_b64 exec, s[30:31]")
    k("s_waitcnt lgkmcnt(0)")
    T2 = 16
    for r in range(1, 8):
        sidx = r // 2
        dst = T2 + 4 * (r - 1)
        if r == 4:
            src = H + 2
        elif r & 1:
            for j in range(4):
                k(f"v_alignbit_b32 {v(dst + j)}, {v(H + sidx + j + 1)}, {v(H + sidx + j)}, 16")
            src = dst
        else:
            for j in range(4):
                k(f"v_mov_b32 {v(dst + j)}, {v(H + sidx + j)}")
            src = dst
        k(f"ds_write_b128 v1, {v(src, 4)} offset:{UOFF + r * UST + 320}")
    VA, VB = 12, 13
    k("v_and_b32 v2, 15, v0")
    k("v_bfe_u32 v3, v0, 4, 2")
    k(f"v_sub_u32 {v(VA)}, v3, v2")
    k(f"v_lshlrev_b32 {v(VA)}, 4, {v(VA)}")
    k("s_lshl_b32 s25, s24, 6")
    k(f"s_sub_u32 s26, {KOFF + 48 + 192}, s25")
    k(f"v_add_u32 {v(VA)}, s26, {v(VA)}")
    k(f"v_and_b32 {v(TMP)}, 7, v2")
    k(f"v_mul_u32_u24 {v(VB)}, {UST}, {v(TMP)}")
    k(f"v_lshrrev_b32 {v(TMP + 1)}, 3, v2")
    k(f"v_lshl_add_u32 {v(VB)}, {v(TMP + 1)}, 8, {v(VB)}")
    k(f"v_lshl_add_u32 {v(VB)}, v3, 4, {v(VB)}")
    k(f"s_sub_u32 s26, {UOFF + 320 - 512 + 192}, s25")
    k(f"v_add_u32 {v(VB)}, s26, {v(VB)}")
    VA2, VB2 = 14, 15
    k(f"v_subrev_u32 {v(VA2)}, 256, {v(VA)}")
    k(f"v_subrev_u32 {v(VB2)}, 256, {v(VB)}")
    ACC = 32
    AR = 64
    BR = 100
    for r in range(32):
        k(f"v_mov_b32 {v(ACC + r)}, 0")
    k("s_waitcnt vmcnt(0) lgkmcnt(0)")
    k("s_barrier")
    k.stamp()
    lg = Cnt(k, "lgkmcnt", 15)

    def areg(slot, part):
        return AR + slot * 4

    def loadA(ps, kk, slot):
        for part in range(1):
            lg.issue(("A", ps, kk, part))
            k(f"ds_read_b128 {v(areg(slot, part), 4)}, {v(VA if ps == 0 else VA2)} offset:{512 * (8 - kk)}")

    def loadB(ps, m):
        slot = m if m >= 0 else 8
        lg.issue(("B", ps, m))
        k(f"ds_read_b128 {v(BR + 4 * slot, 4)}, {v(VB if ps == 0 else VB2)} offset:{512 * (m + 1)}")

    def mm(ps, t, kk, slot, m):
        bslot = m if m >= 0 else 8
        lg.wait(("B", ps, m))
        for part in range(1):
            lg.wait(("A", ps, kk, part))
            k(f"v_mfma_f32_16x16x32_f16 {v(ACC + 4 * t, 4)}, {v(areg(slot, part), 4)}, {v(BR + 4 * bslot, 4)}, {v(ACC + 4 * t, 4)}")

    loadB(0, 0)
    for kk in range(7):
        loadA(0, kk, kk)
    for m in range(8):
        for kk in range(8 - m):
            mm(0, m + kk, kk, kk, m)
            if m == 0 and kk == 0:
                loadA(0, 7, 7)
            if m == 0 and 1 <= kk <= 7:
                loadB(0, kk)
        if m == 0:
            lg.drain()
            k("s_cmp_lg_u32 s24, 0")
            k(f"s_cbranch_scc1 {name}_noext")
            loadA(0, 8, 8)
            loadB(0, -1)
            for t in range(8):
                mm(0, t, t + 1, t + 1, -1)
            lg.drain()
            k.label(f"{name}_noext")
        loadB(1, m)
        loadA(1, m, 7 - m)
    for m in range(8):
        for kk in range(8 - m):
            mm(1, m + kk, kk, 7 - kk, m)
    lg.drain()
    k.stamp()
    k("s_barrier")
    ET = 16
    k(f"v_and_b32 {v(ET)}, 7, v2")
    k(f"v_lshrrev_b32 {v(ET + 1)}, 3, v2")
    k(f"v_lshlrev_b32 {v(ET + 2)}, 2, {v(ET)}")
    k(f"v_lshl_add_u32 {v(ET + 2)}, {v(ET + 1)}, 9, {v(ET + 2)}")
    k(f"v_lshl_add_u32 {v(ET + 2)}, v3, 7, {v(ET + 2)}")
    k("s_lshl_b32 s25, s24, 13")
    k(f"v_add_u32 {v(ET + 2)}, s25, {v(ET + 2)}")
    k(f"v_and_b32 {v(ET + 3)}, 1, v3")
    k(f"v_lshl_or_b32 {v(ET + 3)}, {v(ET + 1)}, 1, {v(ET + 3)}")
    for kk in range(4):
        k(f"v_xor_b32 {v(ET + 4 + kk)}, {kk}, {v(ET + 3)}")
        k(f"v_lshl_add_u32 {v(ET + 4 + kk)}, {v(ET + 4 + kk)}, 5, {v(ET + 2)}")
    for t in range(8):
        for kk in range(4):
            k(f"ds_write_b32 {v(ET + 4 + kk)}, {v(ACC + 4 * t + kk)} offset:{UOFF + 1024 * t}")
        if t % 3 == 2:
            k("s_waitcnt lgkmcnt(0)")
    k("s_waitcnt lgkmcnt(0)")
    k("s_barrier")
    k.stamp()
    k("v_bfe_u32 v2, v0, 2, 1")
    k("v_bfe_u32 v3, v0, 4, 1")
    k("v_lshl_or_b32 v2, v3, 1, v2")
    k("v_xor_b32 v2, v2, v0")
    k("v_lshlrev_b32 v2, 5, v2")
    R = 64
    for w in range(4):
        k(f"ds_read_b128 {v(R + 8 * w, 4)}, v2 offset:{UOFF + 8192 * w}")
        k(f"ds_read_b128 {v(R + 8 * w + 4, 4)}, v2 offset:{UOFF + 8192 * w + 16}")
    k("s_and_b32 s25, s2, 1")
    k("s_lshl_b32 s25, s25, 4")
    k("s_lshr_b32 s29, s29, s25")
    k("s_lshl_b32 s29, s29, 16")
    HD = 16
    for j in range(8):
        unpack(k, HD + j, HB + j // 2, j & 1)
        k(f"v_mul_f32 {v(HD + j)}, s29, {v(HD + j)}")
    round_pairs(k, [HD + j for j in range(8)], TMP)
    for j in range(8):
        unpack(k, XF + j, X + j // 2, j & 1)
    k("s_waitcnt lgkmcnt(0)")
    for j in range(8):
        k(f"v_add_f32 {v(R + j)}, {v(R + j)}, {v(R + 8 + j)}")
        k(f"v_add_f32 {v(R + 16 + j)}, {v(R + 16 + j)}, {v(R + 24 + j)}")
        k(f"v_add_f32 {v(R + j)}, {v(R + j)}, {v(R + 16 + j)}")
        k(f"v_mul_f32 {v(R + j)}, s32, {v(R + j)}")
    round_pairs(k, [R + j for j in range(8)], TMP)
    for j in range(8):
        k(f"v_add_f32 {v(R + j)}, {v(R + j)}, {v(HD + j)}")
    round_pairs(k, [R + j for j in range(8)], TMP)
    for j in range(8):
        k(f"v_add_f32 {v(R + j)}, {v(R + j)}, {v(XF + j)}")
    for j in range(4):
        k(f"v_cvt_pk_bf16_f32 {v(TMP + j)}, {v(R + 2 * j)}, {v(R + 2 * j + 1)}")
    k(f"buffer_store_dwordx4 {v(TMP, 4)}, {v(XO)}, s[20:23], s33 offen")
    k.stamp()
    k.stamp(real=True)
    k.dump_stamps(4, WS_DIAG)
    k.tl_end(4, WS_DIAG)
    k.label(done)
    k("s_endpgm")
    return k


def extend(kernels, launches):
    kernels.append(gen_conv([("conv2_kernel", WS_X2T, WS_ST2, WS_X3T), ("conv1_kernel", WS_X0T, WS_ST0, WS_X1T)]))
    launches.append(("conv1_kernel", D, 256, CONV_LDS))
    if os.environ.get("FUSE", "1") == "1":
        import gen4
        gen4.extend(kernels, launches)
    else:
        import gen3
        gen3.extend(kernels, launches)
```

```python
from asmlib import Kernel, a, s, v
from gen import *
from gen2 import Cnt, unpack, round_pairs, ln_stats, gen_conv, CONV_LDS

import os
EXP = os.environ.get('EXP', 'norot')
OOB = 0x40000000
G1_STAT = 131072
GLT = GKS * 1024


STG = 40960
G1_LDS = 4 * STG


def gen_gemm1(variants):
    name = "gemm1"
    k = Kernel(name)
    k.stubs = [(nm, [f"s_mov_b32 s50, 0x{xi:x}"]) for nm, xi in variants]
    k.maxs = 50
    k.tl = os.environ.get('TL', '') == '1'
    if k.tl:
        for (nm, lines), li in zip(k.stubs, (5, 2)):
            lines.append(f"s_mov_b32 s57, {li}")
    k.tl_start()
    ws_xin = "s50"
    k.diag = DIAG == name
    done = f"{name}_done"
    k("s_load_dwordx2 s[4:5], s[0:1], 120")
    k("s_cmp_ge_u32 s2, 256")
    k(f"s_cbranch_scc1 {done}")
    k.stamp(real=True)
    k.stamp()
    k("v_readfirstlane_b32 s47, v0")
    k("s_lshr_b32 s47, s47, 6")
    k("s_lshr_b32 s46, s47, 2")
    k("s_and_b32 s24, s47, 3")
    k("s_and_b32 s25, s2, 7")
    k("s_lshr_b32 s26, s2, 3")
    k("s_lshr_b32 s27, s25, 1")
    k("s_lshl_b32 s27, s27, 2")
    k("s_and_b32 s28, s26, 3")
    k("s_add_u32 s27, s27, s28")
    k("s_and_b32 s28, s25, 1")
    k("s_lshl_b32 s28, s28, 3")
    k("s_lshr_b32 s29, s26, 2")
    k("s_add_u32 s28, s28, s29")
    k("s_mul_i32 s29, s28, 11")
    k("s_mul_i32 s30, s24, 3")
    k("s_add_u32 s29, s29, s30")
    SA, SG, SC = 32, 36, 40
    for mt in range(3):
        k(f"s_add_u32 s30, s29, {mt}")
        k(f"s_lshl_b32 {s(SA + mt)}, s30, 14")
        k(f"s_lshl_b32 {s(SC + mt)}, s30, 6")
        k("s_lshr_b32 s31, s30, 2")
        k("s_lshl_b32 s31, s31, 10")
        k("s_and_b32 s30, s30, 3")
        k("s_lshl_b32 s30, s30, 8")
        k("s_add_u32 s31, s31, s30")
        k(f"s_mul_i32 s30, s27, {8 * GLT}")
        k(f"s_add_u32 {s(SG + mt)}, s31, s30")
    k("s_cmp_eq_u32 s24, 3")
    k(f"s_cselect_b32 {s(SA + 2)}, 0x{NPT * 16384:x}, {s(SA + 2)}")
    k(f"s_cselect_b32 {s(SG + 2)}, 0x{OOB:x}, {s(SG + 2)}")
    k(f"s_cselect_b32 {s(SC + 2)}, 0x{OOB:x}, {s(SC + 2)}")
    k("s_lshl_b32 s30, s46, 10")
    for mt in range(3):
        k(f"s_add_u32 {s(SA + mt)}, {s(SA + mt)}, s30")
        if mt:
            k(f"s_sub_u32 {s(SA + mt)}, {s(SA + mt)}, {mt * 1024}")
    VB, VA = 8, 16
    GR, CSR, CS2 = 20, 24, 36
    ACC = 48
    AF, BF = 96, 120
    k("v_and_b32 v3, 63, v0")
    k("v_lshlrev_b32 v1, 4, v3")
    k("v_lshrrev_b32 v4, 4, v3")
    k("v_and_b32 v5, 15, v3")
    k("s_and_b32 s30, s47, 1")
    k("s_lshl_b32 s30, s30, 3")
    k("v_lshlrev_b32 v6, 1, v4")
    k("v_or_b32 v6, s30, v6")
    k("v_xor_b32 v6, v6, v5")
    k("v_lshlrev_b32 v6, 4, v6")
    k("v_lshl_add_u32 v2, v4, 8, v6")
    k("s_lshl_b32 s44, s47, 11")
    k("s_lshl_b32 s31, s27, 17")
    k("s_add_u32 s30, s44, s31")
    k("v_add_u32 v2, s30, v2")
    k(f"s_mul_i32 s45, s46, 12288")
    k("s_mul_i32 s30, s24, 3072")
    k("s_add_u32 s45, s45, s30")
    k("s_add_u32 s45, s45, 16384")
    k("s_waitcnt lgkmcnt(0)")
    k.srd(8, 4, ws_xin, XT_BYTES)
    k.srd(12, 4, WS_W1, W1_BYTES)
    k.srd(16, 4, WS_CS, 2 * CS_HALF)
    k.srd(20, 4, WS_G, G_BYTES)
    vm = Cnt(k, "vmcnt", 60)
    lg = Cnt(k, "lgkmcnt", 15)

    def dma(i, q):
        slot = (i % 4) * STG
        if q == 0:
            k(f"s_add_u32 m0, s44, {slot}")
            k(f"s_mov_b32 s48, {i * 16384}")
        if q < 2:
            vm.issue(("S", i))
            k(f"buffer_load_dwordx4 v2, s[8:11], s48 offen offset:{1024 * q} lds")
            return
        mt = q - 2
        if mt == 0:
            k(f"s_add_u32 m0, s45, {slot}")
        if i:
            k(f"s_add_u32 {s(SA + mt)}, {s(SA + mt)}, 2048")
        vm.issue(("S", i))
        k(f"buffer_load_dwordx4 v1, s[12:15], {s(SA + mt)} offen offset:{1024 * mt} lds")

    PRO = int(os.environ.get('PRO1', '3'))
    for i in range(PRO):
        for q in range(5):
            dma(i, q)
    k("v_lshrrev_b32 v6, 2, v5")
    k("v_and_b32 v7, 1, v4")
    k("v_lshlrev_b32 v7, 3, v7")
    k("v_lshl_or_b32 v7, v6, 1, v7")
    k("v_lshlrev_b32 v7, 4, v7")
    k("v_lshl_add_u32 v6, v4, 3, v6")
    k("v_lshlrev_b32 v6, 8, v6")
    k("v_and_b32 v18, 3, v3")
    k("v_lshl_add_u32 v6, v18, 3, v6")
    k("s_lshl_b32 s49, s46, 2")
    for jl in range(4):
        k(f"s_add_u32 s30, s24, {jl}")
        k("s_and_b32 s30, s30, 3")
        k("s_add_u32 s30, s30, s49")
        k("s_lshl_b32 s30, s30, 5")
        k(f"v_xor_b32 {v(VB + jl)}, s30, v7")
        k(f"v_add_u32 {v(VB + jl)}, {v(VB + jl)}, v6")
        k(f"v_add_u32 {v(VB + 4 + jl)}, {2 * STG}, {v(VB + jl)}")
    k("s_mul_i32 s30, s24, 3072")
    k("s_add_u32 s30, s30, 16384")
    k(f"v_add_u32 {v(VA)}, s30, v1")
    k(f"v_add_u32 {v(VA + 1)}, {2 * STG}, {v(VA)}")
    for r in range(48):
        k(f"v_mov_b32 {v(ACC + r)}, 0")
    for r in range(4):
        k(f"v_mov_b32 {v(GR + r)}, 0")

    def frag_reads(ss):
        i, sub = ss // 2, ss % 2
        slot = i % 4
        vset = slot // 2
        base = (slot % 2) * STG
        par = ss % 2
        out = []
        for mt in range(3):
            def fa(mt=mt):
                lg.issue(("A", ss, mt))
                k(f"ds_read_b128 {v(AF + par * 12 + 4 * mt, 4)}, {v(VA + vset)} offset:{base + sub * 12288 + mt * 1024}")
            out.append(fa)
        for jl in range(4):
            def fb(jl=jl):
                for half in range(2):
                    lg.issue(("B", ss, jl))
                    k(f"ds_read_b64_tr_b16 {v(BF + par * 16 + 4 * jl + 2 * half, 2)}, {v(VB + 4 * vset + jl)} offset:{base + sub * 8192 + half * 1024}")
            out.append(fb)
        return out

    vm.wait(("S", 0))
    k("s_barrier")
    k.stamp(lg)
    for f in frag_reads(0):
        f()
    for i in range(PRO, 4):
        for q in range(5):
            dma(i, q)
    k("v_lshlrev_b32 v6, 4, v4")
    k(f"v_add_u32 v7, {CS_HALF}, v6")
    for ss in range(16):
        i, sub = ss // 2, ss % 2
        par = ss % 2
        pend = []
        if sub == 1 and i + 1 < 8:
            lg.drain()
            vm.wait(("S", i + 1))
            k("s_barrier")
            if i + 4 < 8:
                pend = [(lambda q=q: dma(i + 4, q)) for q in range(5)]
            if i == 4:
                def cs(mt):
                    vm.issue(("CS",))
                    k(f"buffer_load_dwordx4 {v(CSR + 4 * mt, 4)}, v6, s[16:19], {s(SC + mt)} offen")
                    vm.issue(("CS",))
                    k(f"buffer_load_dwordx4 {v(CS2 + 4 * mt, 4)}, v7, s[16:19], {s(SC + mt)} offen")
                pend = [(lambda mt=mt: cs(mt)) for mt in range(3)]
        if ss % 4 == 0:
            k.stamp(lg)
        reads = frag_reads(ss + 1) if ss + 1 < 16 else []
        fill = reads + pend
        n = 0
        for jl in range(4):
            lg.wait(("B", ss, jl))
            for mt in range(3):
                lg.wait(("A", ss, mt))
                acc = ACC + (mt * 4 + jl) * 4
                k(f"v_mfma_f32_16x16x32_bf16 {v(acc, 4)}, {v(AF + par * 12 + 4 * mt, 4)}, {v(BF + par * 16 + 4 * jl, 4)}, {v(acc, 4)}")
                if fill:
                    fill.pop(0)()
            if jl == 0:
                k(f"v_mfma_f32_16x16x32_bf16 {v(GR, 4)}, {v(BF + par * 16, 4)}, {v(BF + par * 16, 4)}, {v(GR, 4)}")
        while fill:
            fill.pop(0)()
    k.stamp(lg)
    lg.drain()
    JA = AF
    for jl in range(4):
        k(f"s_add_u32 s30, s24, {jl}")
        k("s_and_b32 s30, s30, 3")
        k("s_add_u32 s30, s30, s49")
        k("s_lshl_b32 s31, s30, 4")
        k(f"v_add_u32 {v(JA + jl)}, s31, v5")
        k(f"v_lshlrev_b32 {v(JA + 4 + jl)}, 2, {v(JA + jl)}")
    k("v_and_b32 v7, 3, v5")
    g = GR
    k("v_cmp_eq_u32 vcc, 1, v7")
    k(f"v_cndmask_b32 {v(g)}, {v(g)}, {v(g + 1)}, vcc")
    k("v_cmp_eq_u32 vcc, 2, v7")
    k(f"v_cndmask_b32 {v(g)}, {v(g)}, {v(g + 2)}, vcc")
    k("v_cmp_eq_u32 vcc, 3, v7")
    k(f"v_cndmask_b32 {v(g)}, {v(g)}, {v(g + 3)}, vcc")
    k("v_lshrrev_b32 v7, 2, v5")
    k("v_cmp_eq_u32 vcc, v7, v4")
    k("s_and_saveexec_b64 s[30:31], vcc")
    k(f"ds_write_b32 {v(JA + 4)}, {v(GR)} offset:512")
    k("s_mov_b64 exec, s[30:31]")
    k("s_cmp_lg_u32 s24, 3")
    k(f"s_cbranch_scc1 {name}_nosum")
    k("v_cmp_gt_u32 vcc, 16, v3")
    k("s_and_saveexec_b64 s[30:31], vcc")
    for jl in range(4):
        k(f"ds_write_b32 {v(JA + 4 + jl)}, {v(ACC + (8 + jl) * 4)}")
    k("s_mov_b64 exec, s[30:31]")
    k.label(f"{name}_nosum")
    k("s_waitcnt lgkmcnt(0)")
    k("s_barrier")
    k.stamp()
    ET = BF
    k("v_lshlrev_b32 v7, 3, v3")
    k(f"ds_read_b64 {v(ET + 8, 2)}, v7")
    k(f"ds_read_b64 {v(ET + 10, 2)}, v7 offset:512")
    vm.drain()
    for r in range(0, 12, 2):
        k(f"v_pk_add_f32 {v(CSR + r, 2)}, {v(CSR + r, 2)}, {v(CS2 + r, 2)}")
    k("s_waitcnt lgkmcnt(0)")
    S2 = ET
    k(f"v_mov_b32 {v(S2)}, {v(ET + 8)}")
    k(f"v_mov_b32 {v(S2 + 1)}, {v(ET + 10)}")
    k(f"v_mov_b32 {v(S2 + 2)}, {v(ET + 9)}")
    k(f"v_mov_b32 {v(S2 + 3)}, {v(ET + 11)}")
    MB, RI = ET + 4, ET + 6
    ln_stats(k, S2, 2, MB, RI, ET + 12)
    for j in range(2):
        k(f"v_mov_b32 {v(ET + 8 + 2 * j)}, {v(RI + j)}")
        k(f"v_mul_f32 {v(ET + 9 + 2 * j)}, {v(MB + j)}, {v(RI + j)}")
    k("s_lshl_b32 s30, s47, 10")
    k("s_add_u32 s30, s30, 1024")
    k("v_add_u32 v7, s30, v1")
    k(f"ds_write_b128 v7, {v(ET + 8, 4)}")
    k("s_waitcnt lgkmcnt(0)")
    RM = VB
    for jl in range(4):
        k(f"v_lshl_add_u32 v7, {v(JA + jl)}, 3, s30")
        k(f"ds_read_b64 {v(RM + 2 * jl, 2)}, v7")
    k("v_add_u32 v6, s24, v4")
    k("v_and_b32 v6, 3, v6")
    k("v_add_u32 v6, s49, v6")
    k(f"v_mul_u32_u24 v6, {GLT}, v6")
    k("v_lshl_add_u32 v6, v5, 4, v6")
    k(f"s_mov_b32 s30, {hx(-LOG2E)}")
    k(f"s_mov_b32 s31, {hx(-LOG2E)}")
    k("s_waitcnt lgkmcnt(0)")
    for mt in range(3):
        Ts = [ET + 16 + 4 * j for j in range(4)]
        Es = [ET + 2 * j for j in range(4)]
        OUT = ET + 8 + 4 * (mt % 2)
        for jl, T in enumerate(Ts):
            rm = v(RM + 2 * jl, 2)
            k(f"v_pk_mul_f32 {v(T, 2)}, {v(CSR + 4 * mt, 2)}, {rm} op_sel:[0,1] op_sel_hi:[1,1]")
            k(f"v_pk_mul_f32 {v(T + 2, 2)}, {v(CSR + 4 * mt + 2, 2)}, {rm} op_sel:[0,1] op_sel_hi:[1,1]")
        for jl, T in enumerate(Ts):
            acc = ACC + (mt * 4 + jl) * 4
            rm = v(RM + 2 * jl, 2)
            k(f"v_pk_fma_f32 {v(T, 2)}, {v(acc, 2)}, {rm}, {v(T, 2)} op_sel_hi:[1,0,1] neg_lo:[0,0,1] neg_hi:[0,0,1]")
            k(f"v_pk_fma_f32 {v(T + 2, 2)}, {v(acc + 2, 2)}, {rm}, {v(T + 2, 2)} op_sel_hi:[1,0,1] neg_lo:[0,0,1] neg_hi:[0,0,1]")
        for T, E in zip(Ts, Es):
            k(f"v_pk_mul_f32 {v(E, 2)}, {v(T, 2)}, s[30:31]")
        for E in Es:
            k(f"v_exp_f32 {v(E)}, {v(E)}")
            k(f"v_exp_f32 {v(E + 1)}, {v(E + 1)}")
        for T in Ts:
            k(f"v_pk_mul_f32 {v(T, 2)}, {v(T, 2)}, {v(T + 2, 2)}")
        for E in Es:
            k(f"v_pk_add_f32 {v(E, 2)}, {v(E, 2)}, 1.0 op_sel_hi:[1,0]")
        for E in Es:
            k(f"v_rcp_f32 {v(E)}, {v(E)}")
            k(f"v_rcp_f32 {v(E + 1)}, {v(E + 1)}")
        for T, E in zip(Ts, Es):
            k(f"v_pk_mul_f32 {v(T, 2)}, {v(T, 2)}, {v(E, 2)}")
        for jl, T in enumerate(Ts):
            k(f"v_cvt_pk_bf16_f32 {v(OUT + jl)}, {v(T)}, {v(T + 1)}")
        k(f"v_permlane32_swap_b32 {v(OUT)}, {v(OUT + 2)}")
        k(f"v_permlane32_swap_b32 {v(OUT + 1)}, {v(OUT + 3)}")
        k(f"v_permlane16_swap_b32 {v(OUT)}, {v(OUT + 1)}")
        k(f"v_permlane16_swap_b32 {v(OUT + 2)}, {v(OUT + 3)}")
        k(f"buffer_store_dwordx4 {v(OUT, 4)}, v6, s[20:23], {s(SG + mt)} offen")
    k.stamp()
    k.stamp(real=True)
    k.dump_stamps(4, WS_DIAG)
    k.tl_end(4, WS_DIAG)
    k.label(done)
    k("s_endpgm")
    return k


RS2 = 272
G2_RED = 64 * RS2
G2_LDS = 4 * G2_RED + 2048


def gen_gemm2(variants, ws_xout, ws_st):
    name = "gemm2"
    k = Kernel(name)
    k.stubs = [(nm, [f"s_mov_b32 s44, 0x{xi:x}", f"s_mov_b32 s45, {fl}"]) for nm, xi, fl in variants]
    k.maxs = 45
    k.tl = os.environ.get('TL', '') == '1'
    if k.tl:
        for (nm, lines), li in zip(k.stubs, (6, 3)):
            lines.append(f"s_mov_b32 s57, {li}")
    k.tl_start()
    ws_xin = "s44"
    k.diag = DIAG == name
    done = f"{name}_done"
    k("s_load_dwordx2 s[4:5], s[0:1], 120")
    k("s_load_dwordx2 s[6:7], s[0:1], 104")
    k("s_cmp_ge_u32 s2, 256")
    k(f"s_cbranch_scc1 {done}")
    k.stamp(real=True)
    k.stamp()
    k("v_readfirstlane_b32 s28, v0")
    k("s_lshr_b32 s28, s28, 6")
    k("s_and_b32 s29, s2, 7")
    k("s_lshr_b32 s30, s2, 3")
    k("s_lshl_b32 s29, s29, 2")
    k("s_and_b32 s31, s30, 3")
    k("s_add_u32 s29, s29, s31")
    k("s_lshr_b32 s30, s30, 2")
    SG, SW = 32, 36
    for i in range(4):
        k(f"s_lshl_b32 s31, s29, 2")
        k(f"s_add_u32 s31, s31, {i}")
        k(f"s_mul_i32 {s(SG + i)}, s31, {GLT}")
        k(f"s_lshl_b32 s31, s30, 2")
        k(f"s_add_u32 s31, s31, {i}")
        k(f"s_mul_i32 {s(SW + i)}, s31, {NKS2 * 1024}")
    k("v_and_b32 v3, 63, v0")
    k("v_lshlrev_b32 v1, 4, v3")
    k("s_lshl_b32 s31, s28, 10")
    k("v_add_u32 v24, s31, v1")
    k("s_lshr_b32 s42, s2, 3")
    k("s_and_b32 s42, s42, 3")
    k("s_mul_i32 s42, s42, 3")
    k("s_add_u32 s42, s42, s30")
    k("s_cmp_ge_u32 s42, 11")
    k("s_cselect_b32 s43, 11, 0")
    k("s_sub_u32 s42, s42, s43")
    if "norot" in EXP:
        k("s_mov_b32 s42, 0")
    k("s_lshl_b32 s42, s42, 12")
    k("v_and_b32 v4, 7, v0")
    k("v_lshrrev_b32 v5, 3, v0")
    k("v_lshlrev_b32 v2, 8, v5")
    k("v_lshl_add_u32 v2, v4, 4, v2")
    k("s_lshl_b32 s31, s30, 14")
    k("s_lshr_b32 s40, s29, 1")
    k("s_lshl_b32 s40, s40, 17")
    k("s_add_u32 s31, s31, s40")
    k("s_and_b32 s40, s29, 1")
    k("s_lshl_b32 s40, s40, 7")
    k("s_add_u32 s31, s31, s40")
    k("v_add_u32 v2, s31, v2")
    k("s_mov_b32 s41, 0x2000")
    k("s_waitcnt lgkmcnt(0)")
    k.srd(8, 4, WS_G, G_BYTES)
    k.srd(12, 4, WS_W2, W2_BYTES)
    k.srd(16, 4, ws_xin, XT_BYTES)
    k.srd(20, 4, ws_xout, XT_BYTES)
    k.srd(24, 4, ws_st, ST_BYTES)
    k.srd(48, 6, 0, XT_BYTES)
    ACC, ST0, XR, ET = 32, 96, 8, 16
    NSTG = int(os.environ.get('PF2', '5'))
    vm = Cnt(k, "vmcnt", 62)

    def sreg(it, off):
        return a(it * 32 + off, 4) if it < 8 else v(ST0 + (it - 8) * 32 + off, 4)

    def issue(it):
        if it:
            k("s_add_u32 s42, s42, 0x1000")
            k(f"s_cmp_ge_u32 s42, {11 * 4096}")
            k("s_cselect_b32 s42, 0, s42")
        k("v_add_u32 v1, s42, v24")
        for i in range(4):
            vm.issue(("S", it))
            k(f"buffer_load_dwordx4 {sreg(it, 4 * i)}, v1, s[8:11], {s(SG + i)} offen")
            vm.issue(("S", it))
            k(f"buffer_load_dwordx4 {sreg(it, 16 + 4 * i)}, v1, s[12:15], {s(SW + i)} offen")

    NIT = 11
    for it in range(NSTG):
        issue(it)
    vm.issue(("XR",))
    k(f"buffer_load_dwordx4 {v(XR, 4)}, v2, s[16:19], 0 offen")
    vm.issue(("XR",))
    k(f"buffer_load_dwordx4 {v(XR + 4, 4)}, v2, s[16:19], s41 offen")
    for r in range(64):
        k(f"v_mov_b32 {v(ACC + r)}, 0")
    for it in range(NIT):
        vm.wait(("S", it))
        if it in (0, 1, 3, 6, 9):
            k.stamp()
        for aa in range(4):
            for b in range(4):
                acc = ACC + (aa * 4 + b) * 4
                k(f"v_mfma_f32_16x16x32_bf16 {v(acc, 4)}, {sreg(it, 4 * aa)}, {sreg(it, 16 + 4 * b)}, {v(acc, 4)}")
        if it + NSTG < NIT:
            issue(it + NSTG)
    k.stamp()
    k("v_and_b32 v6, 15, v3")
    k("v_lshrrev_b32 v7, 4, v3")
    k(f"v_mul_u32_u24 v6, {RS2}, v6")
    k("v_lshl_add_u32 v6, v7, 4, v6")
    k(f"s_mul_i32 s31, s28, {G2_RED}")
    k("v_add_u32 v6, s31, v6")
    n = 0
    for aa in range(4):
        for b in range(4):
            acc = ACC + (aa * 4 + b) * 4
            k(f"ds_write_b128 v6, {v(acc, 4)} offset:{b * 16 * RS2 + aa * 64}")
            n += 1
            if n % 8 == 0:
                k("s_waitcnt lgkmcnt(0)")
    k("s_barrier")
    k.stamp()
    k(f"v_mul_u32_u24 v6, {RS2}, v5")
    k("v_lshl_add_u32 v6, v4, 5, v6")
    R = 96
    for dd in range(2):
        for w in range(4):
            for hf in range(2):
                k(f"ds_read_b128 {v(R + dd * 32 + w * 8 + 4 * hf, 4)}, v6 offset:{w * G2_RED + dd * 32 * RS2 + 16 * hf}")
        k("s_waitcnt lgkmcnt(0)")
    vm.drain()
    O = 32
    PK = 48
    XF = 56
    for dd in range(2):
        for j in range(8):
            r0 = R + dd * 32 + j
            k(f"v_add_f32 {v(r0)}, {v(r0)}, {v(r0 + 8)}")
            k(f"v_add_f32 {v(r0 + 16)}, {v(r0 + 16)}, {v(r0 + 24)}")
            k(f"v_add_f32 {v(O + dd * 8 + j)}, {v(r0)}, {v(r0 + 16)}")
        round_pairs(k, [O + dd * 8 + j for j in range(8)], ET)
        for j in range(8):
            unpack(k, XF + j, XR + dd * 4 + j // 2, j & 1)
            k(f"v_add_f32 {v(O + dd * 8 + j)}, {v(O + dd * 8 + j)}, {v(XF + j)}")
        for j in range(4):
            k(f"v_cvt_pk_bf16_f32 {v(PK + dd * 4 + j)}, {v(O + dd * 8 + 2 * j)}, {v(O + dd * 8 + 2 * j + 1)}")
    k("s_cmp_lg_u32 s45, 0")
    k(f"s_cbranch_scc1 {name}_final")
    if True:
        k(f"buffer_store_dwordx4 {v(PK, 4)}, v2, s[20:23], 0 offen")
        k(f"buffer_store_dwordx4 {v(PK + 4, 4)}, v2, s[20:23], s41 offen")
        SV, QV = 64, 72
        for dd in range(2):
            for j in range(8):
                unpack(k, O + dd * 8 + j, PK + dd * 4 + j // 2, j & 1)
        for j in range(8):
            k(f"v_add_f32 {v(SV + j)}, {v(O + j)}, {v(O + 8 + j)}")
            k(f"v_mul_f32 {v(QV + j)}, {v(O + j)}, {v(O + j)}")
            k(f"v_fmac_f32 {v(QV + j)}, {v(O + 8 + j)}, {v(O + 8 + j)}")
        for base in (SV, QV):
            for j in range(4):
                k(f"v_permlane32_swap_b32 {v(base + j)}, {v(base + j + 4)}")
            for j in range(4):
                k(f"v_add_f32 {v(base + j)}, {v(base + j)}, {v(base + j + 4)}")
        for base in (SV, QV):
            for j in range(2):
                k(f"v_permlane16_swap_b32 {v(base + j)}, {v(base + j + 2)}")
            for j in range(2):
                k(f"v_add_f32 {v(base + j)}, {v(base + j)}, {v(base + j + 2)}")
        for base in (SV, QV):
            for j in range(2):
                k(f"v_add_f32_dpp {v(base + 4 + j)}, {v(base + j)}, {v(base + j)} row_ror:8 row_mask:0xf bank_mask:0xf")
        k("v_and_b32 v6, 8, v3")
        k("v_cmp_eq_u32 vcc, 0, v6")
        k(f"v_cndmask_b32 {v(SV)}, {v(SV + 5)}, {v(SV + 4)}, vcc")
        k(f"v_cndmask_b32 {v(QV)}, {v(QV + 5)}, {v(QV + 4)}, vcc")
        k("v_lshrrev_b32 v6, 3, v3")
        k("v_lshl_add_u32 v6, v4, 3, v6")
        k("v_lshlrev_b32 v6, 3, v6")
        k(f"v_mov_b32 {v(SV + 1)}, {v(QV)}")
        k("s_lshl_b32 s31, s28, 9")
        k(f"s_add_u32 s31, s31, {4 * G2_RED}")
        k("v_add_u32 v7, s31, v6")
        k(f"ds_write_b64 v7, {v(SV, 2)}")
        k("s_waitcnt lgkmcnt(0)")
        k("s_barrier")
        k("s_cmp_lg_u32 s28, 0")
        k(f"s_cbranch_scc1 {name}_tail")
        k("v_lshlrev_b32 v6, 3, v3")
        k(f"v_add_u32 v7, {4 * G2_RED}, v6")
        for w in range(4):
            k(f"ds_read_b64 {v(SV + 2 * w, 2)}, v7 offset:{512 * w}")
        k("s_waitcnt lgkmcnt(0)")
        k(f"v_pk_add_f32 {v(SV, 2)}, {v(SV, 2)}, {v(SV + 2, 2)}")
        k(f"v_pk_add_f32 {v(SV + 4, 2)}, {v(SV + 4, 2)}, {v(SV + 6, 2)}")
        k(f"v_pk_add_f32 {v(SV, 2)}, {v(SV, 2)}, {v(SV + 4, 2)}")
        k("s_lshl_b32 s31, s29, 9")
        k(f"buffer_atomic_add_f32 {v(SV)}, v6, s[24:27], s31 offen")
        k(f"buffer_atomic_add_f32 {v(SV + 1)}, v6, s[24:27], s31 offen offset:4")
        k(f"s_branch {name}_tail")
    k.label(f"{name}_final")
    k.fence(4)
    if True:
        RT = 144
        k("s_barrier")
        k(f"v_mul_u32_u24 v6, {8 * RT}, v4")
        k("v_lshl_add_u32 v6, v5, 1, v6")
        for dd in range(2):
            for j in range(8):
                op = "ds_write_b16_d16_hi" if j & 1 else "ds_write_b16"
                k(f"{op} v6, {v(PK + dd * 4 + j // 2)} offset:{j * RT + dd * 64}")
            k("s_waitcnt lgkmcnt(0)")
        k("s_barrier")
        k(f"v_mul_u32_u24 v6, {RT}, v5")
        k("v_lshl_add_u32 v6, v4, 4, v6")
        k(f"ds_read_b128 {v(O, 4)}, v6")
        k(f"ds_read_b128 {v(O + 4, 4)}, v6 offset:{32 * RT}")
        k("v_lshlrev_b32 v7, 10, v5")
        k("v_lshl_add_u32 v7, v4, 4, v7")
        k("s_lshl_b32 s31, s29, 16")
        k("s_lshl_b32 s40, s30, 7")
        k("s_add_u32 s31, s31, s40")
        k("s_add_u32 s40, s31, 0x8000")
        k("s_waitcnt lgkmcnt(0)")
        k(f"buffer_store_dwordx4 {v(O, 4)}, v7, s[48:51], s31 offen")
        k(f"buffer_store_dwordx4 {v(O + 4, 4)}, v7, s[48:51], s40 offen")
    k.label(f"{name}_tail")
    k.stamp()
    k.stamp(real=True)
    k.dump_stamps(4, WS_DIAG)
    k.tl_end(4, WS_DIAG)
    k.label(done)
    k("s_endpgm")
    return k


def extend(kernels, launches):
    kernels.append(gen_gemm1([("gemm1b_kernel", WS_X3T), ("gemm1a_kernel", WS_X1T)]))
    kernels.append(gen_gemm2([("gemm2b_kernel", WS_X3T, 1), ("gemm2a_kernel", WS_X1T, 0)], WS_X2T, WS_ST2))
    launches.append(("gemm1a_kernel", 256, 512, G1_LDS))
    launches.append(("gemm2a_kernel", 256, 256, G2_LDS))
    launches.append(("conv2_kernel", D, 256, CONV_LDS))
    launches.append(("gemm1b_kernel", 256, 512, G1_LDS))
    launches.append(("gemm2b_kernel", 256, 256, G2_LDS))
```

```python
import os
from asmlib import Kernel, a, s, v
from gen import *
from gen2 import Cnt, unpack, round_pairs, ln_stats, gen_conv, CONV_LDS

OOB = 0x40000000
GLT = GKS * 1024
STG = 40960
FFN_LDS = 4 * STG
W2L = 10240
RS2 = 272
G2_RED = 64 * RS2


def gen_ffn(variants, ws_xout, ws_st):
    name = "ffn"
    k = Kernel(name)
    k.stubs = [(nm, [f"s_mov_b32 s50, 0x{xi:x}", f"s_mov_b32 s51, {fl}"]) for nm, xi, fl in variants]
    k.maxs = 69
    k.tl = os.environ.get('TL', '') == '1'
    if k.tl:
        for (nm, lines), li in zip(k.stubs, (4, 2)):
            lines.append(f"s_mov_b32 s57, {li}")
    k.tl_start()
    k.diag = DIAG == name
    done = f"{name}_done"
    k("s_load_dwordx2 s[4:5], s[0:1], 120")
    k("s_load_dwordx2 s[6:7], s[0:1], 104")
    k("s_cmp_ge_u32 s2, 256")
    k(f"s_cbranch_scc1 {done}")
    k.stamp(real=True)
    k.stamp()
    k("v_readfirstlane_b32 s47, v0")
    k("s_lshr_b32 s47, s47, 6")
    k("s_lshr_b32 s46, s47, 2")
    k("s_and_b32 s24, s47, 3")
    k("s_and_b32 s25, s2, 7")
    k("s_lshr_b32 s26, s2, 3")
    k("s_lshr_b32 s27, s25, 1")
    k("s_lshl_b32 s27, s27, 2")
    k("s_and_b32 s28, s26, 3")
    k("s_add_u32 s27, s27, s28")
    k("s_and_b32 s28, s25, 1")
    k("s_lshl_b32 s28, s28, 3")
    k("s_lshr_b32 s29, s26, 2")
    k("s_add_u32 s28, s28, s29")
    k("s_mul_i32 s29, s28, 11")
    k("s_mul_i32 s30, s24, 3")
    k("s_add_u32 s29, s29, s30")
    SA, SG, SC = 32, 36, 40
    for mt in range(3):
        k(f"s_add_u32 s30, s29, {mt}")
        k(f"s_lshl_b32 {s(SA + mt)}, s30, 14")
        k(f"s_lshl_b32 {s(SC + mt)}, s30, 6")
        k("s_lshr_b32 s31, s30, 2")
        k("s_lshl_b32 s31, s31, 10")
        k("s_and_b32 s30, s30, 3")
        k("s_lshl_b32 s30, s30, 8")
        k("s_add_u32 s31, s31, s30")
        k(f"s_mul_i32 s30, s27, {8 * GLT}")
        k(f"s_add_u32 {s(SG + mt)}, s31, s30")
    k("s_cmp_eq_u32 s24, 3")
    k(f"s_cselect_b32 {s(SA + 2)}, 0x{NPT * 16384:x}, {s(SA + 2)}")
    k(f"s_cselect_b32 {s(SG + 2)}, 0x{OOB:x}, {s(SG + 2)}")
    k(f"s_cselect_b32 {s(SC + 2)}, 0x{OOB:x}, {s(SC + 2)}")
    k("s_lshl_b32 s30, s46, 10")
    for mt in range(3):
        k(f"s_add_u32 {s(SA + mt)}, {s(SA + mt)}, s30")
        if mt:
            k(f"s_sub_u32 {s(SA + mt)}, {s(SA + mt)}, {mt * 1024}")
    VB, VA = 8, 16
    GR, CSR, CS2 = 20, 24, 36
    ACC = 48
    AF, BF = 96, 120
    k("v_and_b32 v3, 63, v0")
    k("v_lshlrev_b32 v1, 4, v3")
    k("v_lshrrev_b32 v4, 4, v3")
    k("v_and_b32 v5, 15, v3")
    k("s_and_b32 s30, s47, 1")
    k("s_lshl_b32 s30, s30, 3")
    k("v_lshlrev_b32 v6, 1, v4")
    k("v_or_b32 v6, s30, v6")
    k("v_xor_b32 v6, v6, v5")
    k("v_lshlrev_b32 v6, 4, v6")
    k("v_lshl_add_u32 v2, v4, 8, v6")
    k("s_lshl_b32 s44, s47, 11")
    k("s_lshl_b32 s31, s27, 17")
    k("s_add_u32 s30, s44, s31")
    k("v_add_u32 v2, s30, v2")
    k(f"s_mul_i32 s45, s46, 12288")
    k("s_mul_i32 s30, s24, 3072")
    k("s_add_u32 s45, s45, s30")
    k("s_add_u32 s45, s45, 16384")
    k(f"s_mul_i32 s30, s51, {G_LAYER}")
    k(f"s_add_u32 s30, s30, {WS_G}")
    k("s_waitcnt lgkmcnt(0)")
    k.srd(8, 4, "s50", XT_BYTES)
    k.srd(12, 4, WS_W1, W1_BYTES)
    k.srd(20, 4, "s30", G_BYTES)
    vm = Cnt(k, "vmcnt", 60)
    lg = Cnt(k, "lgkmcnt", 15)

    def dma(i, q):
        slot = (i % 4) * STG
        if q == 0:
            k(f"s_add_u32 m0, s44, {slot}")
            k(f"s_mov_b32 s48, {i * 16384}")
        if q < 2:
            vm.issue(("S", i))
            k(f"buffer_load_dwordx4 v2, s[8:11], s48 offen offset:{1024 * q} lds")
            return
        mt = q - 2
        if mt == 0:
            k(f"s_add_u32 m0, s45, {slot}")
        if i:
            k(f"s_add_u32 {s(SA + mt)}, {s(SA + mt)}, 2048")
        vm.issue(("S", i))
        k(f"buffer_load_dwordx4 v1, s[12:15], {s(SA + mt)} offen offset:{1024 * mt} lds")

    PRO = int(os.environ.get('PRO1', '3'))
    for i in range(PRO):
        for q in range(5):
            dma(i, q)
    k.srd(16, 4, WS_CS, 2 * CS_HALF)
    k.srd(60, 4, WS_W2, W2_BYTES)
    k.srd(64, 4, WS_CNT, 4096)
    k("s_lshr_b32 s26, s28, 1")
    k("s_lshl_b32 s30, s26, 2")
    k("s_add_u32 s30, s30, s24")
    k(f"s_mul_i32 s68, s30, {NKS2 * 1024}")
    k("s_lshl_b32 s30, s46, 10")
    k("s_add_u32 s68, s68, s30")
    k("s_lshl_b32 s69, s46, 12")
    k("s_lshl_b32 s30, s24, 10")
    k("s_add_u32 s69, s69, s30")
    k(f"s_add_u32 s69, s69, {W2L}")

    def w2dma():
        k("s_mov_b32 m0, s69")
        vm.issue(("W2",))
        k("buffer_load_dwordx4 v1, s[60:63], s68 offen lds")
        k("s_add_u32 s68, s68, 2048")
        k("s_add_u32 s69, s69, 8192")

    def w2tail(j):
        for b in range(4):
            k("s_lshl_b32 s30, s26, 2")
            k(f"s_add_u32 s30, s30, {b}")
            k(f"s_mul_i32 s30, s30, {NKS2 * 1024}")
            k(f"s_lshl_b32 s31, s24, 10")
            k("s_add_u32 s30, s30, s31")
            k(f"s_add_u32 s30, s30, {(36 + 4 * j) * 1024}")
            vm.issue(("W2",))
            k(f"buffer_load_dwordx4 {a(16 * j + 4 * b, 4)}, v1, s[60:63], s30 offen")

    k("v_lshrrev_b32 v6, 2, v5")
    k("v_and_b32 v7, 1, v4")
    k("v_lshlrev_b32 v7, 3, v7")
    k("v_lshl_or_b32 v7, v6, 1, v7")
    k("v_lshlrev_b32 v7, 4, v7")
    k("v_lshl_add_u32 v6, v4, 3, v6")
    k("v_lshlrev_b32 v6, 8, v6")
    k("v_and_b32 v18, 3, v3")
    k("v_lshl_add_u32 v6, v18, 3, v6")
    k("s_lshl_b32 s49, s46, 2")
    for jl in range(4):
        k(f"s_add_u32 s30, s24, {jl}")
        k("s_and_b32 s30, s30, 3")
        k("s_add_u32 s30, s30, s49")
        k("s_lshl_b32 s30, s30, 5")
        k(f"v_xor_b32 {v(VB + jl)}, s30, v7")
        k(f"v_add_u32 {v(VB + jl)}, {v(VB + jl)}, v6")
        k(f"v_add_u32 {v(VB + 4 + jl)}, {2 * STG}, {v(VB + jl)}")
    k("s_mul_i32 s30, s24, 3072")
    k("s_add_u32 s30, s30, 16384")
    k(f"v_add_u32 {v(VA)}, s30, v1")
    k(f"v_add_u32 {v(VA + 1)}, {2 * STG}, {v(VA)}")
    for r in range(48):
        k(f"v_mov_b32 {v(ACC + r)}, 0")
    for r in range(4):
        k(f"v_mov_b32 {v(GR + r)}, 0")

    def frag_reads(ss):
        i, sub = ss // 2, ss % 2
        slot = i % 4
        vset = slot // 2
        base = (slot % 2) * STG
        par = ss % 2
        out = []
        for mt in range(3):
            def fa(mt=mt):
                lg.issue(("A", ss, mt))
                k(f"ds_read_b128 {v(AF + par * 12 + 4 * mt, 4)}, {v(VA + vset)} offset:{base + sub * 12288 + mt * 1024}")
            out.append(fa)
        for jl in range(4):
            def fb(jl=jl):
                for half in range(2):
                    lg.issue(("B", ss, jl))
                    k(f"ds_read_b64_tr_b16 {v(BF + par * 16 + 4 * jl + 2 * half, 2)}, {v(VB + 4 * vset + jl)} offset:{base + sub * 8192 + half * 1024}")
            out.append(fb)
        return out

    vm.wait(("S", 0))
    k("s_barrier")
    k.stamp(lg)
    for f in frag_reads(0):
        f()
    for i in range(PRO, 4):
        for q in range(5):
            dma(i, q)
    k("v_lshlrev_b32 v6, 4, v4")
    k(f"v_add_u32 v7, {CS_HALF}, v6")

    def cs(mt):
        vm.issue(("CS",))
        k(f"buffer_load_dwordx4 {v(CSR + 4 * mt, 4)}, v6, s[16:19], {s(SC + mt)} offen")
        vm.issue(("CS",))
        k(f"buffer_load_dwordx4 {v(CS2 + 4 * mt, 4)}, v7, s[16:19], {s(SC + mt)} offen")

    for ss in range(16):
        i, sub = ss // 2, ss % 2
        par = ss % 2
        pend = []
        if sub == 1 and i + 1 < 8:
            lg.drain()
            vm.wait(("S", i + 1))
            k("s_barrier")
            if i + 4 < 8:
                pend = [(lambda q=q: dma(i + 4, q)) for q in range(5)]
            else:
                pend = [w2dma] * (3 if i == 4 else 5)
        if ss == 8:
            pend = [(lambda mt=mt: cs(mt)) for mt in range(3)]
        if ss == 12:
            pend = [lambda: w2tail(0)]
        if ss == 14:
            pend = [lambda: w2tail(1)]
        if ss % 8 == 0:
            k.stamp(lg)
        reads = frag_reads(ss + 1) if ss + 1 < 16 else []
        fill = reads + pend
        for jl in range(4):
            lg.wait(("B", ss, jl))
            for mt in range(3):
                lg.wait(("A", ss, mt))
                acc = ACC + (mt * 4 + jl) * 4
                k(f"v_mfma_f32_16x16x32_bf16 {v(acc, 4)}, {v(AF + par * 12 + 4 * mt, 4)}, {v(BF + par * 16 + 4 * jl, 4)}, {v(acc, 4)}")
                if fill:
                    fill.pop(0)()
            if jl == 0:
                k(f"v_mfma_f32_16x16x32_bf16 {v(GR, 4)}, {v(BF + par * 16, 4)}, {v(BF + par * 16, 4)}, {v(GR, 4)}")
        while fill:
            fill.pop(0)()
    k.stamp(lg)
    lg.drain()
    JA = AF
    for jl in range(4):
        k(f"s_add_u32 s30, s24, {jl}")
        k("s_and_b32 s30, s30, 3")
        k("s_add_u32 s30, s30, s49")
        k("s_lshl_b32 s31, s30, 4")
        k(f"v_add_u32 {v(JA + jl)}, s31, v5")
        k(f"v_lshlrev_b32 {v(JA + 4 + jl)}, 2, {v(JA + jl)}")
    k("v_and_b32 v7, 3, v5")
    g = GR
    k("v_cmp_eq_u32 vcc, 1, v7")
    k(f"v_cndmask_b32 {v(g)}, {v(g)}, {v(g + 1)}, vcc")
    k("v_cmp_eq_u32 vcc, 2, v7")
    k(f"v_cndmask_b32 {v(g)}, {v(g)}, {v(g + 2)}, vcc")
    k("v_cmp_eq_u32 vcc, 3, v7")
    k(f"v_cndmask_b32 {v(g)}, {v(g)}, {v(g + 3)}, vcc")
    k("v_lshrrev_b32 v7, 2, v5")
    k("v_cmp_eq_u32 vcc, v7, v4")
    k("s_and_saveexec_b64 s[30:31], vcc")
    k(f"ds_write_b32 {v(JA + 4)}, {v(GR)} offset:512")
    k("s_mov_b64 exec, s[30:31]")
    k("s_cmp_lg_u32 s24, 3")
    k(f"s_cbranch_scc1 {name}_nosum")
    k("v_cmp_gt_u32 vcc, 16, v3")
    k("s_and_saveexec_b64 s[30:31], vcc")
    for jl in range(4):
        k(f"ds_write_b32 {v(JA + 4 + jl)}, {v(ACC + (8 + jl) * 4)}")
    k("s_mov_b64 exec, s[30:31]")
    k.label(f"{name}_nosum")
    k("s_waitcnt lgkmcnt(0)")
    k("s_barrier")
    k.stamp()
    ET = BF
    k("v_lshlrev_b32 v7, 3, v3")
    k(f"ds_read_b64 {v(ET + 8, 2)}, v7")
    k(f"ds_read_b64 {v(ET + 10, 2)}, v7 offset:512")
    vm.wait(("CS",))
    for _ in range(5):
        w2dma()
    for r in range(0, 12, 2):
        k(f"v_pk_add_f32 {v(CSR + r, 2)}, {v(CSR + r, 2)}, {v(CS2 + r, 2)}")
    k("s_waitcnt lgkmcnt(0)")
    S2 = ET
    k(f"v_mov_b32 {v(S2)}, {v(ET + 8)}")
    k(f"v_mov_b32 {v(S2 + 1)}, {v(ET + 10)}")
    k(f"v_mov_b32 {v(S2 + 2)}, {v(ET + 9)}")
    k(f"v_mov_b32 {v(S2 + 3)}, {v(ET + 11)}")
    MB, RI = ET + 4, ET + 6
    ln_stats(k, S2, 2, MB, RI, ET + 12)
    for j in range(2):
        k(f"v_mov_b32 {v(ET + 8 + 2 * j)}, {v(RI + j)}")
        k(f"v_mul_f32 {v(ET + 9 + 2 * j)}, {v(MB + j)}, {v(RI + j)}")
    k("s_lshl_b32 s30, s47, 10")
    k("s_add_u32 s30, s30, 1024")
    k("v_add_u32 v7, s30, v1")
    k(f"ds_write_b128 v7, {v(ET + 8, 4)}")
    k("s_waitcnt lgkmcnt(0)")
    RM = VB
    for jl in range(4):
        k(f"v_lshl_add_u32 v7, {v(JA + jl)}, 3, s30")
        k(f"ds_read_b64 {v(RM + 2 * jl, 2)}, v7")
    k("v_add_u32 v6, s24, v4")
    k("v_and_b32 v6, 3, v6")
    k("v_add_u32 v6, s49, v6")
    k(f"v_mul_u32_u24 v6, {GLT}, v6")
    k("v_lshl_add_u32 v6, v5, 4, v6")
    k(f"s_mov_b32 s30, {hx(-LOG2E)}")
    k(f"s_mov_b32 s31, {hx(-LOG2E)}")
    k("s_waitcnt lgkmcnt(0)")
    for mt in range(3):
        Ts = [ET + 16 + 4 * j for j in range(4)]
        Es = [ET + 2 * j for j in range(4)]
        OUT = ET + 8 + 4 * (mt % 2)
        for jl, T in enumerate(Ts):
            rm = v(RM + 2 * jl, 2)
            k(f"v_pk_mul_f32 {v(T, 2)}, {v(CSR + 4 * mt, 2)}, {rm} op_sel:[0,1] op_sel_hi:[1,1]")
            k(f"v_pk_mul_f32 {v(T + 2, 2)}, {v(CSR + 4 * mt + 2, 2)}, {rm} op_sel:[0,1] op_sel_hi:[1,1]")
        for jl, T in enumerate(Ts):
            acc = ACC + (mt * 4 + jl) * 4
            rm = v(RM + 2 * jl, 2)
            k(f"v_pk_fma_f32 {v(T, 2)}, {v(acc, 2)}, {rm}, {v(T, 2)} op_sel_hi:[1,0,1] neg_lo:[0,0,1] neg_hi:[0,0,1]")
            k(f"v_pk_fma_f32 {v(T + 2, 2)}, {v(acc + 2, 2)}, {rm}, {v(T + 2, 2)} op_sel_hi:[1,0,1] neg_lo:[0,0,1] neg_hi:[0,0,1]")
        for T, E in zip(Ts, Es):
            k(f"v_pk_mul_f32 {v(E, 2)}, {v(T, 2)}, s[30:31]")
        for E in Es:
            k(f"v_exp_f32 {v(E)}, {v(E)}")
            k(f"v_exp_f32 {v(E + 1)}, {v(E + 1)}")
        for T in Ts:
            k(f"v_pk_mul_f32 {v(T, 2)}, {v(T, 2)}, {v(T + 2, 2)}")
        for E in Es:
            k(f"v_pk_add_f32 {v(E, 2)}, {v(E, 2)}, 1.0 op_sel_hi:[1,0]")
        for E in Es:
            k(f"v_rcp_f32 {v(E)}, {v(E)}")
            k(f"v_rcp_f32 {v(E + 1)}, {v(E + 1)}")
        for T, E in zip(Ts, Es):
            k(f"v_pk_mul_f32 {v(T, 2)}, {v(T, 2)}, {v(E, 2)}")
        for jl, T in enumerate(Ts):
            k(f"v_cvt_pk_bf16_f32 {v(OUT + jl)}, {v(T)}, {v(T + 1)}")
        k(f"v_permlane32_swap_b32 {v(OUT)}, {v(OUT + 2)}")
        k(f"v_permlane32_swap_b32 {v(OUT + 1)}, {v(OUT + 3)}")
        k(f"v_permlane16_swap_b32 {v(OUT)}, {v(OUT + 1)}")
        k(f"v_permlane16_swap_b32 {v(OUT + 2)}, {v(OUT + 3)}")
        vm.issue(("GS",))
        assert STFLAGS_IS_SC1
        k(f"buffer_store_dwordx4 {v(OUT, 4)}, v6, s[20:23], {s(SG + mt)} offen")
    k.stamp()
    k("s_and_b32 s30, s28, 1")
    k("s_lshl_b32 s29, s27, 1")
    k("s_add_u32 s29, s29, s30")
    SG2 = 36
    for aa in range(2):
        k("s_lshl_b32 s30, s29, 2")
        k("s_lshl_b32 s31, s46, 1")
        k("s_add_u32 s30, s30, s31")
        k(f"s_add_u32 s30, s30, {aa}")
        k(f"s_mul_i32 {s(SG2 + aa)}, s30, {GLT}")
    k("s_lshl_b32 s31, s24, 10")
    k("v_add_u32 v8, s31, v1")
    k("s_lshl_b32 s31, s24, 12")
    k(f"s_add_u32 s31, s31, {W2L}")
    k("v_add_u32 v9, s31, v1")
    k("v_and_b32 v10, 7, v0")
    k("v_lshrrev_b32 v11, 3, v0")
    k("v_lshlrev_b32 v12, 8, v11")
    k("v_lshl_add_u32 v12, v10, 4, v12")
    k("s_lshl_b32 s31, s26, 14")
    k("s_lshl_b32 s40, s27, 17")
    k("s_add_u32 s31, s31, s40")
    k("s_and_b32 s40, s28, 1")
    k("s_lshl_b32 s40, s40, 7")
    k("s_add_u32 s31, s31, s40")
    k("v_add_u32 v12, s31, v12")
    XR, A2, GF = 16, 32, 64
    vm.issue(("XR",))
    k(f"buffer_load_dwordx4 {v(XR, 4)}, v12, s[8:11], 0 offen")
    k.srd(12, 4, ws_xout, XT_BYTES)
    k.srd(16, 4, ws_st, ST_BYTES)
    k.srd(32, 6, 0, XT_BYTES)
    for r in range(32):
        k(f"v_mov_b32 {v(A2 + r)}, 0")
    vm.drain()
    k("s_barrier")
    k("s_cmp_lg_u32 s47, 0")
    k(f"s_cbranch_scc1 {name}_wait")
    k("s_lshl_b32 s30, s51, 4")
    k("s_add_u32 s30, s30, s27")
    k("s_lshl_b32 s30, s30, 7")
    k("v_mov_b32 v6, 0")
    k("v_mov_b32 v7, 1")
    k("v_cmp_eq_u32 vcc, 0, v3")
    k("s_and_saveexec_b64 s[40:41], vcc")
    k("buffer_atomic_add v7, v6, s[64:67], s30 offen sc1")
    k("s_mov_b32 s31, 0")
    k.label(f"{name}_poll")
    k("buffer_load_dword v7, v6, s[64:67], s30 offen sc1")
    k("s_waitcnt vmcnt(0)")
    k("v_readfirstlane_b32 s42, v7")
    k("s_cmp_ge_u32 s42, 16")
    k(f"s_cbranch_scc1 {name}_ready")
    k("s_add_u32 s31, s31, 1")
    k("s_cmp_ge_u32 s31, 0x40000")
    k(f"s_cbranch_scc1 {name}_ready")
    k("s_sleep 1")
    k(f"s_branch {name}_poll")
    k.label(f"{name}_ready")
    k("s_mov_b64 exec, s[40:41]")
    k.label(f"{name}_wait")
    k.fence(4)
    k("s_barrier")
    k.stamp()
    NIT = 11
    for it in range(NIT):
        if it:
            k("v_add_u32 v8, 0x1000, v8")
        for aa in range(2):
            vm.issue(("G", it))
            k(f"buffer_load_dwordx4 {v(GF + 8 * it + 4 * aa, 4)}, v8, s[20:23], {s(SG2 + aa)} offen sc1")
    WB = 32

    def wreads(it):
        if it >= 9:
            return
        if it in (4, 8):
            k("v_add_u32 v9, 0x10000, v9")
        for b in range(4):
            lg.issue(("W", it))
            k(f"ds_read_b128 {a(WB + 16 * (it % 2) + 4 * b, 4)}, v9 offset:{(it % 4) * 16384 + b * 1024}")

    def wreg(it, b):
        return a(WB + 16 * (it % 2) + 4 * b, 4) if it < 9 else a(16 * (it - 9) + 4 * b, 4)

    wreads(0)
    for it in range(NIT):
        wreads(it + 1)
        vm.wait(("G", it))
        lg.wait(("W", it))
        if it in (0,):
            k.stamp(lg)
        for aa in range(2):
            for b in range(4):
                acc = A2 + (aa * 4 + b) * 4
                k(f"v_mfma_f32_16x16x32_bf16 {v(acc, 4)}, {v(GF + 8 * it + 4 * aa, 4)}, {wreg(it, b)}, {v(acc, 4)}")
    k.stamp(lg)
    lg.drain()
    k("s_barrier")
    k(f"v_mul_u32_u24 v6, {RS2}, v5")
    k("v_lshl_add_u32 v6, v4, 4, v6")
    k(f"s_mul_i32 s31, s24, {G2_RED}")
    k("s_lshl_b32 s30, s46, 7")
    k("s_add_u32 s31, s31, s30")
    k("v_add_u32 v6, s31, v6")
    for aa in range(2):
        for b in range(4):
            acc = A2 + (aa * 4 + b) * 4
            k(f"ds_write_b128 v6, {v(acc, 4)} offset:{b * 16 * RS2 + aa * 64}")
    k("s_waitcnt lgkmcnt(0)")
    k("s_barrier")
    k(f"v_mul_u32_u24 v6, {RS2}, v11")
    k("v_lshl_add_u32 v6, v10, 5, v6")
    R = 64
    for w in range(4):
        for hf in range(2):
            k(f"ds_read_b128 {v(R + w * 8 + 4 * hf, 4)}, v6 offset:{w * G2_RED + 16 * hf}")
    O, PK, XF, E2 = 32, 40, 44, 52
    for j in range(8):
        unpack(k, XF + j, XR + j // 2, j & 1)
    k("s_waitcnt lgkmcnt(0)")
    for j in range(0, 8, 2):
        k(f"v_pk_add_f32 {v(R + j, 2)}, {v(R + j, 2)}, {v(R + 8 + j, 2)}")
        k(f"v_pk_add_f32 {v(R + 16 + j, 2)}, {v(R + 16 + j, 2)}, {v(R + 24 + j, 2)}")
        k(f"v_pk_add_f32 {v(O + j, 2)}, {v(R + j, 2)}, {v(R + 16 + j, 2)}")
    round_pairs(k, [O + j for j in range(8)], E2)
    for j in range(0, 8, 2):
        k(f"v_pk_add_f32 {v(O + j, 2)}, {v(O + j, 2)}, {v(XF + j, 2)}")
    for j in range(4):
        k(f"v_cvt_pk_bf16_f32 {v(PK + j)}, {v(O + 2 * j)}, {v(O + 2 * j + 1)}")
    k("s_cmp_lg_u32 s51, 0")
    k(f"s_cbranch_scc1 {name}_final")
    k(f"buffer_store_dwordx4 {v(PK, 4)}, v12, s[12:15], 0 offen")
    SV, QV = 64, 72
    for j in range(8):
        unpack(k, SV + j, PK + j // 2, j & 1)
    for j in range(0, 8, 2):
        k(f"v_pk_mul_f32 {v(QV + j, 2)}, {v(SV + j, 2)}, {v(SV + j, 2)}")
    for base in (SV, QV):
        for j in range(4):
            k(f"v_permlane32_swap_b32 {v(base + j)}, {v(base + j + 4)}")
        for j in range(0, 4, 2):
            k(f"v_pk_add_f32 {v(base + j, 2)}, {v(base + j, 2)}, {v(base + j + 4, 2)}")
    for base in (SV, QV):
        for j in range(2):
            k(f"v_permlane16_swap_b32 {v(base + j)}, {v(base + j + 2)}")
        k(f"v_pk_add_f32 {v(base, 2)}, {v(base, 2)}, {v(base + 2, 2)}")
    for base in (SV, QV):
        for j in range(2):
            k(f"v_add_f32_dpp {v(base + 4 + j)}, {v(base + j)}, {v(base + j)} row_ror:8 row_mask:0xf bank_mask:0xf")
    k("v_and_b32 v6, 8, v3")
    k("v_cmp_eq_u32 vcc, 0, v6")
    k(f"v_cndmask_b32 {v(SV)}, {v(SV + 5)}, {v(SV + 4)}, vcc")
    k(f"v_cndmask_b32 {v(SV + 1)}, {v(QV + 5)}, {v(QV + 4)}, vcc")
    k("v_lshrrev_b32 v6, 3, v3")
    k("v_lshl_add_u32 v6, v10, 3, v6")
    k("v_lshlrev_b32 v6, 3, v6")
    k("s_lshl_b32 s31, s47, 9")
    k(f"s_add_u32 s31, s31, {4 * G2_RED}")
    k("v_add_u32 v7, s31, v6")
    k(f"ds_write_b64 v7, {v(SV, 2)}")
    k("s_waitcnt lgkmcnt(0)")
    k("s_barrier")
    k("s_cmp_lg_u32 s47, 0")
    k(f"s_cbranch_scc1 {name}_tail")
    k("v_lshlrev_b32 v6, 3, v3")
    k(f"v_add_u32 v7, {4 * G2_RED}, v6")
    for w in range(8):
        k(f"ds_read_b64 {v(SV + 2 * w, 2)}, v7 offset:{512 * w}")
    k("s_waitcnt lgkmcnt(0)")
    for st in (2, 4, 8):
        for w in range(0, 16, 2 * st):
            k(f"v_pk_add_f32 {v(SV + w, 2)}, {v(SV + w, 2)}, {v(SV + w + st, 2)}")
    k("s_lshl_b32 s31, s29, 9")
    k(f"buffer_atomic_add_f32 {v(SV)}, v6, s[16:19], s31 offen")
    k(f"buffer_atomic_add_f32 {v(SV + 1)}, v6, s[16:19], s31 offen offset:4")
    k(f"s_branch {name}_tail")
    k.label(f"{name}_final")
    k.fence(4)
    RT = 144
    k("s_barrier")
    k(f"v_mul_u32_u24 v6, {8 * RT}, v10")
    k("v_lshl_add_u32 v6, v11, 1, v6")
    for j in range(8):
        op = "ds_write_b16_d16_hi" if j & 1 else "ds_write_b16"
        k(f"{op} v6, {v(PK + j // 2)} offset:{j * RT}")
    k("s_waitcnt lgkmcnt(0)")
    k("s_barrier")
    k(f"v_mul_u32_u24 v6, {RT}, v11")
    k("v_lshl_add_u32 v6, v10, 4, v6")
    k(f"ds_read_b128 {v(O, 4)}, v6")
    k("v_lshlrev_b32 v7, 10, v11")
    k("v_lshl_add_u32 v7, v10, 4, v7")
    k("s_lshl_b32 s31, s29, 16")
    k("s_lshl_b32 s40, s26, 7")
    k("s_add_u32 s31, s31, s40")
    k("s_waitcnt lgkmcnt(0)")
    k(f"buffer_store_dwordx4 {v(O, 4)}, v7, s[32:35], s31 offen")
    k.label(f"{name}_tail")
    k.stamp()
    k.stamp(real=True)
    k.dump_stamps(4, WS_DIAG)
    k.tl_end(4, WS_DIAG)
    k.label(done)
    k("s_endpgm")
    return k


import asmlib
STFLAGS_IS_SC1 = asmlib.STFLAGS == "sc1"


def extend(kernels, launches):
    kernels.append(gen_ffn([("ffn2_kernel", WS_X3T, 1), ("ffn1_kernel", WS_X1T, 0)], WS_X2T, WS_ST2))
    launches.append(("ffn1_kernel", 256, 512, FFN_LDS))
    launches.append(("conv2_kernel", D, 256, CONV_LDS))
    launches.append(("ffn2_kernel", 256, 512, FFN_LDS))
```

```python
import struct
import sys

from asmlib import Kernel, a, s, v

L, D, NST, F = 2048, 512, 128, 1376

KR_PART = 4608
KR_CH = 5120
P0 = 2072
WS_KR = 0x0000000
WS_X0T = 0x0500000
WS_X1T = 0x0700000
WS_X2T = 0x0900000
WS_X3T = 0x0B00000
XT_BYTES = D * L * 2
WS_ST0 = 0x0D00000
WS_ST2 = 0x0D10000
ST_BYTES = L * 8
WS_CS = 0x0D20000
NPT = 176
CS_HALF = NPT * 16 * 4
WS_W1 = 0x0E00000
W1_BYTES = (NPT + 1) * 16 * 1024
WS_W2 = 0x1100000
NKS2 = 43
W2_BYTES = 32 * NKS2 * 1024
WS_G = 0x1300000
GKS = 44
G_BYTES = 128 * GKS * 1024
G_LAYER = 0x600000
WS_CNT = 0x0D30000
WS_DIAG = 0x2000000
import os
DIAG = os.environ.get('DIAG', '')


def f32bits(x):
    return struct.unpack("<I", struct.pack("<f", x))[0]


def hx(x):
    return f"0x{f32bits(x):08x}"


LOG2E = 1.4426950408889634
LOG2E_HI = struct.unpack("<f", struct.pack("<f", LOG2E))[0]
LOG2E_LO = LOG2E - LOG2E_HI
LN2 = 0.6931471805599453
INV2PI = 0.15915494309189535
ONES_BF16 = 0x3F803F80


N_KGEN, N_X0, N_W1, N_W2 = 512, 64, 88, 43
PREP_GRID = N_KGEN + N_X0 + N_W1 + N_W2
PREP_LDS = 36864


def row4_sum(k, x, t):
    k(f"v_mov_b32 {v(t)}, {v(x)}")
    k(f"v_permlane16_swap_b32 {v(x)}, {v(t)}")
    k(f"v_add_f32 {v(x)}, {v(x)}, {v(t)}")
    k(f"v_mov_b32 {v(t)}, {v(x)}")
    k(f"v_permlane32_swap_b32 {v(x)}, {v(t)}")
    k(f"v_add_f32 {v(x)}, {v(x)}, {v(t)}")


def gen_prep():
    k = Kernel("prep_kernel")
    k.diag = DIAG == "prep_kernel"
    k.tl = os.environ.get('TL', '') == '1'
    if k.tl:
        k("s_mov_b32 s57, 0")
    k.tl_start()
    k("s_load_dwordx16 s[16:31], s[0:1], 0")
    k("s_load_dwordx8 s[32:39], s[0:1], 80")
    k("s_load_dwordx2 s[40:41], s[0:1], 120")
    k(f"s_cmp_ge_u32 s2, {PREP_GRID}")
    k("s_cbranch_scc1 prep_done")
    k.stamp(real=True)
    k.stamp()
    k(f"s_cmp_ge_u32 s2, {N_KGEN}")
    k("s_cbranch_scc1 prep_not_kgen")

    PRM = 8
    ACC = 64
    TA = 44
    TB = 47
    DT = 48
    T = 64
    k("s_lshl_b32 s3, s2, 8")
    k("v_lshrrev_b32 v1, 4, v0")
    k("v_lshl_add_u32 v1, v1, 3, s3")
    k("s_lshr_b32 s4, s2, 1")
    k("s_lshl_b32 s4, s4, 2")
    k("s_waitcnt lgkmcnt(0)")
    k("s_load_dword s5, s[30:31], s4")
    for i in range(6):
        k(f"global_load_dwordx2 {v(PRM + 2 * i, 2)}, v1, {s(18 + 2 * i, 2)}")
    k.srd(8, 40, WS_KR, 512 * KR_CH)
    k("v_and_b32 v2, 15, v0")
    k("v_lshrrev_b32 v3, 3, v2")
    k("v_and_b32 v4, 7, v2")
    k(f"v_lshl_add_u32 {v(TA)}, v3, 7, v4")
    k("v_lshrrev_b32 v5, 2, v2")
    k("v_and_b32 v6, 3, v2")
    k("v_lshlrev_b32 v6, 1, v6")
    k("v_lshl_add_u32 v5, v5, 7, v6")
    k("v_add_u32 v5, 256, v5")
    k("v_lshrrev_b32 v6, 1, v4")
    k("v_and_b32 v7, 1, v2")
    k("v_lshlrev_b32 v7, 2, v7")
    k("v_lshl_add_u32 v6, v6, 7, v7")
    k("v_add_u32 v6, 512, v6")
    k("v_cmp_gt_u32 vcc, 8, v2")
    k(f"v_cndmask_b32 {v(TA + 1)}, v6, v5, vcc")
    k("v_min_u32 v5, 8, v2")
    k("v_lshlrev_b32 v5, 7, v5")
    k(f"v_add_u32 {v(TA + 2)}, 0x400, v5")
    k(f"v_lshlrev_b32 {v(TB)}, 3, v2")
    for r in (TA, TA + 1, TA + 2, TB):
        k(f"v_cvt_f32_u32 {v(r)}, {v(r)}")
    FT = 24576
    IXO = FT + 4224
    k("v_readfirstlane_b32 s6, v0")
    k("s_cmp_ge_u32 s6, 320")
    k("s_cbranch_scc1 prep_noidx")
    LG, TT, IXP = 20, 28, 36
    X1, X2, X3 = 40, 41, 42
    k("v_lshlrev_b32 v3, 3, v0")
    for jj in range(8):
        k(f"v_sub_u32 {v(LG + jj)}, {P0 - jj}, v3")
        k(f"v_cvt_f32_u32 {v(TT + jj)}, {v(LG + jj)}")
    for jj in range(0, 8, 2):
        k(f"v_cvt_pk_bf16_f32 {v(X1)}, {v(TT + jj)}, {v(TT + jj + 1)}")
        k(f"v_lshlrev_b32 {v(TT + jj)}, 16, {v(X1)}")
        k(f"v_and_b32 {v(TT + jj + 1)}, 0xffff0000, {v(X1)}")
    for jj in range(8):
        t = v(TT + jj)
        k(f"v_cvt_u32_f32 {t}, {t}")
        k(f"v_or_b32 {v(X1)}, 1, {t}")
        k(f"v_ffbh_u32 {v(X1)}, {v(X1)}")
        k(f"v_sub_u32 {v(X1)}, 24, {v(X1)}")
        k(f"v_med3_i32 {v(X1)}, {v(X1)}, 0, 3")
        k(f"v_lshrrev_b32 {v(X2)}, 7, {t}")
        k(f"v_sub_u32 {v(X3)}, 3, {v(X1)}")
        k(f"v_lshlrev_b32 {v(X2)}, {v(X3)}, {v(X2)}")
        k(f"v_and_b32 {v(X3)}, 7, {t}")
        k(f"v_lshrrev_b32 {v(X3)}, {v(X1)}, {v(X3)}")
        k(f"v_lshl_add_u32 {v(X2)}, {v(X1)}, 3, {v(X2)}")
        k(f"v_add_u32 {v(X2)}, {v(X2)}, {v(X3)}")
        k(f"v_bfe_u32 {v(X3)}, {t}, 3, 4")
        k(f"v_lshl_add_u32 {v(X2)}, {v(X2)}, 4, {v(X3)}")
        k(f"v_cmp_gt_u32 vcc, 0x800, {v(LG + jj)}")
        k(f"v_mov_b32 {v(X3)}, 0x400")
        k(f"v_cndmask_b32 {v(X2)}, {v(X3)}, {v(X2)}, vcc")
        if jj & 1:
            k(f"v_lshl_or_b32 {v(IXP + jj // 2)}, {v(X2)}, 18, {v(IXP + jj // 2)}")
        else:
            k(f"v_lshlrev_b32 {v(IXP + jj // 2)}, 2, {v(X2)}")
    k("v_lshlrev_b32 v3, 4, v0")
    k(f"ds_write_b128 v3, {v(IXP, 4)} offset:{IXO}")
    k.label("prep_noidx")
    k.fence(2)
    k("s_waitcnt lgkmcnt(0)")
    k("s_and_b32 s6, s2, 1")
    k("s_lshl_b32 s6, s6, 4")
    k("s_lshr_b32 s5, s5, s6")
    k("s_lshl_b32 s5, s5, 16")
    k(f"v_mov_b32 {v(T)}, s5")
    k(f"v_mul_f32 {v(T + 1)}, {hx(LOG2E_HI)}, {v(T)}")
    k(f"v_mov_b32 {v(T + 2)}, {hx(LOG2E_HI)}")
    k(f"v_fma_f32 {v(T + 2)}, {v(T)}, {v(T + 2)}, -{v(T + 1)}")
    k(f"v_fmac_f32 {v(T + 2)}, {hx(LOG2E_LO)}, {v(T)}")
    k(f"v_exp_f32 {v(T + 3)}, {v(T + 1)}")
    k(f"v_mul_f32 {v(T + 2)}, {hx(LN2)}, {v(T + 2)}")
    k(f"v_fma_f32 {v(T + 3)}, {v(T + 3)}, {v(T + 2)}, {v(T + 3)}")
    k(f"v_cvt_pk_bf16_f32 {v(T + 3)}, {v(T + 3)}, {v(T + 3)}")
    k(f"v_lshlrev_b32 {v(DT)}, 16, {v(T + 3)}")
    k("s_waitcnt vmcnt(0)")
    k.stamp()
    U = 64
    AB, CC, SP = 50, 52, 54
    W = 64
    AH, AL, BH, BL = 20, 32, 56, 60
    k(f"s_mov_b32 s6, {hx(LOG2E)}")
    k(f"s_mov_b32 s7, {hx(INV2PI)}")
    k(f"v_mov_b32 {v(DT + 1)}, {v(DT)}")
    tsrc = [(TA, "op_sel_hi:[1,0]"), (TA, "op_sel:[0,1] op_sel_hi:[1,1]"), (TA + 2, "op_sel_hi:[1,0]"),
            (TA + 2, "op_sel:[0,1] op_sel_hi:[1,1]")]

    def split(src, hi, lo):
        k(f"v_cvt_pk_bf16_f32 {v(hi)}, {v(src)}, {v(src + 1)}")
        k(f"v_lshlrev_b32 {v(SP)}, 16, {v(hi)}")
        k(f"v_and_b32 {v(SP + 1)}, 0xffff0000, {v(hi)}")
        k(f"v_pk_add_f32 {v(SP, 2)}, {v(src, 2)}, {v(SP, 2)} neg_lo:[0,1] neg_hi:[0,1]")
        k(f"v_cvt_pk_bf16_f32 {v(lo)}, {v(SP)}, {v(SP + 1)}")

    for j in range(4):
        for i in range(6):
            src = v(PRM + 2 * i + (j >> 1))
            if j & 1:
                k(f"v_and_b32 {v(U + i)}, 0xffff0000, {src}")
            else:
                k(f"v_lshlrev_b32 {v(U + i)}, 16, {src}")
        k(f"v_pk_mul_f32 {v(AB, 2)}, {v(U, 2)}, {v(DT, 2)}")
        k(f"v_pk_mul_f32 {v(U + 2, 2)}, {v(U + 2, 2)}, {v(DT, 2)}")
        k(f"v_pk_mul_f32 {v(AB, 2)}, {v(AB, 2)}, s[6:7]")
        k(f"v_pk_mul_f32 {v(CC, 2)}, {v(U + 2, 2)}, {v(U + 4, 2)} op_sel_hi:[1,0]")
        k(f"v_pk_fma_f32 {v(CC, 2)}, {v(U + 2, 2)}, {v(U + 4, 2)}, {v(CC, 2)} op_sel:[1,1,0] op_sel_hi:[0,1,1] neg_lo:[1,0,0]")
        for x in range(4):
            k(f"v_pk_mul_f32 {v(W + 4 * x, 2)}, {v(AB, 2)}, {v(tsrc[x][0], 2)} {tsrc[x][1]}")
        for x in range(4):
            k(f"v_fract_f32 {v(W + 4 * x + 1)}, {v(W + 4 * x + 1)}")
        for x in range(4):
            k(f"v_exp_f32 {v(W + 4 * x)}, {v(W + 4 * x)}")
            k(f"v_cos_f32 {v(W + 4 * x + 2)}, {v(W + 4 * x + 1)}")
            k(f"v_sin_f32 {v(W + 4 * x + 3)}, {v(W + 4 * x + 1)}")
        for x in range(3):
            k(f"v_pk_mul_f32 {v(W + 4 * x + 2, 2)}, {v(W + 4 * x + 2, 2)}, {v(W + 4 * x, 2)} op_sel_hi:[1,0] neg_hi:[1,0]")
        k(f"v_pk_mul_f32 {v(W + 14, 2)}, {v(W + 14, 2)}, {v(W + 12, 2)} op_sel_hi:[1,0]")
        k(f"v_pk_mul_f32 {v(W + 12, 2)}, {v(W + 14, 2)}, {v(CC, 2)} op_sel_hi:[1,0]")
        k(f"v_pk_fma_f32 {v(W + 12, 2)}, {v(W + 14, 2)}, {v(CC, 2)}, {v(W + 12, 2)} op_sel:[1,1,0] op_sel_hi:[0,1,1] neg_lo:[1,0,0]")
        for x in range(3):
            split(W + 4 * x + 2, AH + 4 * x + j, AL + 4 * x + j)
        split(W + 12, BH + j, BL + j)
    for x in range(3):
        k(f"v_mfma_f32_16x16x32_bf16 {v(ACC + 4 * x, 4)}, {v(AL + 4 * x, 4)}, {v(BH, 4)}, 0")
    for x in range(3):
        k(f"v_mfma_f32_16x16x32_bf16 {v(ACC + 4 * x, 4)}, {v(AH + 4 * x, 4)}, {v(BL, 4)}, {v(ACC + 4 * x, 4)}")
    for x in range(3):
        k(f"v_mfma_f32_16x16x32_bf16 {v(ACC + 4 * x, 4)}, {v(AH + 4 * x, 4)}, {v(BH, 4)}, {v(ACC + 4 * x, 4)}")
    k.stamp()
    k("v_lshrrev_b32 v3, 6, v0")
    k("v_bfe_u32 v4, v0, 4, 2")
    k("v_mul_u32_u24 v3, 3072, v3")
    k("v_lshl_add_u32 v3, v4, 8, v3")
    k("v_lshl_add_u32 v3, v2, 2, v3")
    for Tt in range(3):
        for kk in range(4):
            k(f"ds_write_b32 v3, {v(ACC + 4 * Tt + kk)} offset:{(16 * Tt + kk) * 64}")
    k("s_waitcnt lgkmcnt(0)")
    k("s_barrier")
    k("v_lshlrev_b32 v3, 2, v0")
    k("v_min_u32 v4, 255, v0")
    k("v_lshlrev_b32 v4, 2, v4")
    for w in range(8):
        k(f"ds_read_b32 {v(T + w)}, v3 offset:{w * 3072}")
    for w in range(6):
        k(f"ds_read_b32 {v(T + 8 + w)}, v4 offset:{w * 3072 + 2048}")
    k("s_waitcnt lgkmcnt(6)")
    for w in range(6, 8):
        k(f"ds_read_b32 {v(T + 8 + w)}, v4 offset:{w * 3072 + 2048}")
    k("v_mov_b32 v4, 0")
    k(f"v_mov_b32 v5, {FT + 1024 * 4}")
    k("ds_write_b32 v5, v4")
    k("s_waitcnt lgkmcnt(0)")
    for e in range(2):
        b = T + 8 * e
        for w in range(0, 8, 2):
            k(f"v_add_f32 {v(b + w)}, {v(b + w)}, {v(b + w + 1)}")
        k(f"v_add_f32 {v(b)}, {v(b)}, {v(b + 2)}")
        k(f"v_add_f32 {v(b + 4)}, {v(b + 4)}, {v(b + 6)}")
        k(f"v_add_f32 {v(b)}, {v(b)}, {v(b + 4)}")
        k(f"ds_write_b32 v3, {v(b)} offset:{FT + e * 2048}")
    k(f"v_cmp_gt_u32 vcc, {641 - 512}, v0")
    k(f"v_cndmask_b32 {v(T + 8)}, 0, {v(T + 8)}, vcc")
    k(f"v_max_f32_e64 {v(T + 1)}, abs({v(T)}), abs({v(T + 8)})")
    for mod in ("row_shr:1", "row_shr:2", "row_shr:4", "row_shr:8"):
        k(f"v_max_f32_dpp {v(T + 1)}, {v(T + 1)}, {v(T + 1)} {mod} row_mask:0xf bank_mask:0xf bound_ctrl:0")
    k(f"v_max_f32_dpp {v(T + 1)}, {v(T + 1)}, {v(T + 1)} row_bcast:15 row_mask:0xa bank_mask:0xf")
    k(f"v_max_f32_dpp {v(T + 1)}, {v(T + 1)}, {v(T + 1)} row_bcast:31 row_mask:0xc bank_mask:0xf")
    MXO = FT + 1028 * 4
    k("v_lshrrev_b32 v4, 6, v0")
    k("v_lshlrev_b32 v4, 2, v4")
    k("v_and_b32 v5, 63, v0")
    k("v_cmp_eq_u32 vcc, 63, v5")
    k("s_and_saveexec_b64 s[12:13], vcc")
    k(f"ds_write_b32 v4, {v(T + 1)} offset:{MXO}")
    k("s_mov_b64 exec, s[12:13]")
    k("s_waitcnt lgkmcnt(0)")
    k("s_barrier")
    k("v_mov_b32 v4, 0")
    k(f"ds_read_b128 {v(T + 2, 4)}, v4 offset:{MXO}")
    k(f"ds_read_b128 {v(T + 6, 4)}, v4 offset:{MXO + 16}")
    k("s_waitcnt lgkmcnt(0)")
    k(f"v_max3_f32 {v(T)}, {v(T + 2)}, {v(T + 3)}, {v(T + 4)}")
    k(f"v_max3_f32 {v(T)}, {v(T)}, {v(T + 5)}, {v(T + 6)}")
    k(f"v_max3_f32 {v(T)}, {v(T)}, {v(T + 7)}, {v(T + 8)}")
    k(f"v_max_f32 {v(T)}, {v(T)}, {v(T + 9)}")
    k(f"v_frexp_exp_i32_f32 {v(T)}, {v(T)}")
    ESC = 48
    k(f"v_sub_u32 {v(ESC)}, 15, {v(T)}")
    k(f"v_sub_u32 {v(T + 1)}, 0, {v(ESC)}")
    k(f"v_ldexp_f32 {v(T + 1)}, 1.0, {v(T + 1)}")
    k(f"s_mul_i32 s4, s2, {KR_CH}")
    k(f"v_mov_b32 v4, {KR_PART}")
    k("v_cmp_eq_u32 vcc, 0, v0")
    k("s_and_saveexec_b64 s[12:13], vcc")
    k(f"buffer_store_dword {v(T + 1)}, v4, s[8:11], s4 offen")
    k("s_mov_b64 exec, s[12:13]")

    k.stamp()

    def expand(chunk_add):
        TT, IX, HI = 16, 24, 36
        k("v_lshlrev_b32 v3, 4, v0")
        k(f"ds_read_b128 {v(8, 4)}, v3 offset:{IXO}")
        k("s_waitcnt lgkmcnt(0)")
        for jj in range(8):
            if jj & 1:
                k(f"v_lshrrev_b32 {v(IX + jj)}, 16, {v(8 + jj // 2)}")
            else:
                k(f"v_and_b32 {v(IX + jj)}, 0xffff, {v(8 + jj // 2)}")
            k(f"ds_read_b32 {v(TT + jj)}, {v(IX + jj)} offset:{FT}")
        k("s_waitcnt lgkmcnt(0)")
        for jj in range(8):
            k(f"v_ldexp_f32 {v(TT + jj)}, {v(TT + jj)}, {v(ESC)}")
        for jj in range(0, 8, 2):
            k(f"v_cvt_pk_f16_f32 {v(HI + jj // 2)}, {v(TT + jj)}, {v(TT + jj + 1)}")
        k(f"buffer_store_dwordx4 {v(HI, 4)}, v3, s[8:11], s4 offen")

    k("v_cmp_gt_u32 vcc, 288, v0")
    k("s_and_saveexec_b64 s[12:13], vcc")
    if not k.diag:
        k("s_cbranch_execz prep_done")
    k.fence(4)
    expand(0)
    k.stamp()
    k.stamp(real=True)
    k.dump_stamps(40, WS_DIAG)
    k("s_mov_b64 exec, -1")
    k.tl_end(40, WS_DIAG)
    k("s_endpgm")

    k.label("prep_not_kgen")
    k.fence(2)
    k("v_readfirstlane_b32 s3, v0")
    k("s_cmp_ge_u32 s3, 256")
    k("s_cbranch_scc1 prep_done")
    k("s_setprio 3")
    if os.environ.get("PFC", "0") == "1":
        k.prefetch_code("conv2_kernel", 28672, 60, 42)
    k(f"s_cmp_ge_u32 s2, {N_KGEN + N_X0}")
    k("s_cbranch_scc1 prep_not_x0")

    RS = 1056

    def transpose32(is_x0):
        src = 16 if is_x0 else 36
        DAT = 8
        k("v_lshlrev_b32 v1, 4, v0")
        k("v_add_u32 v1, s4, v1")
        for j in range(8):
            if j:
                k(f"v_add_u32 v1, 0x1000, v1")
            k(f"global_load_dwordx4 {v(DAT + 4 * j, 4)}, v1, {s(src, 2)}")
        k("v_lshrrev_b32 v2, 6, v0")
        k("v_and_b32 v3, 63, v0")
        k(f"v_mul_u32_u24 v4, {RS}, v2")
        k("v_lshl_add_u32 v4, v3, 4, v4")
        if is_x0:
            SS = 40
            k(f"s_mov_b32 s7, 0x{ONES_BF16:08x}")
        for j in range(8):
            k(f"s_waitcnt vmcnt({7 - j})")
            k(f"ds_write_b128 v4, {v(DAT + 4 * j, 4)} offset:{4 * j * RS}")
            if is_x0:
                k(f"v_mov_b32 {v(SS + 2 * j)}, 0")
                k(f"v_mov_b32 {v(SS + 2 * j + 1)}, 0")
                for q in range(4):
                    k(f"v_dot2_f32_bf16 {v(SS + 2 * j)}, {v(DAT + 4 * j + q)}, s7, {v(SS + 2 * j)}")
                    k(f"v_dot2_f32_bf16 {v(SS + 2 * j + 1)}, {v(DAT + 4 * j + q)}, {v(DAT + 4 * j + q)}, {v(SS + 2 * j + 1)}")
        if is_x0:
            for mod in ("row_shr:1", "row_shr:2", "row_shr:4", "row_shr:8"):
                for r in range(16):
                    k(f"v_add_f32_dpp {v(SS + r)}, {v(SS + r)}, {v(SS + r)} {mod} row_mask:0xf bank_mask:0xf bound_ctrl:0")
            for r in range(16):
                k(f"v_add_f32_dpp {v(SS + r)}, {v(SS + r)}, {v(SS + r)} row_bcast:15 row_mask:0xa bank_mask:0xf")
            for r in range(16):
                k(f"v_add_f32_dpp {v(SS + r)}, {v(SS + r)}, {v(SS + r)} row_bcast:31 row_mask:0xc bank_mask:0xf")
            k("v_lshlrev_b32 v5, 3, v2")
            k("v_add_u32 v5, s5, v5")
            k("v_cmp_eq_u32 vcc, 63, v3")
            k("s_and_saveexec_b64 s[14:15], vcc")
            for j in range(8):
                k(f"buffer_store_dwordx2 {v(SS + 2 * j, 2)}, v5, s[44:47], 0 offen offset:{32 * j}")
            k("s_mov_b64 exec, s[14:15]")
            k("v_mov_b32 v56, 0")
            k("v_mov_b32 v57, 0")
            k("v_mov_b32 v58, 0")
            k("v_mov_b32 v59, 0")
            k("v_lshlrev_b32 v5, 4, v0")
            k("v_add_u32 v5, s5, v5")
            k("v_cmp_gt_u32 vcc, 16, v0")
            k("s_and_saveexec_b64 s[14:15], vcc")
            k("buffer_store_dwordx4 v[56:59], v5, s[48:51], 0 offen")
            k("s_mov_b64 exec, s[14:15]")
            k("s_cmp_lg_u32 s5, 0")
            k("s_cbranch_scc1 prep_nocnt")
            k.srd(48, 40, WS_CNT, 4096)
            k("buffer_store_dwordx4 v[56:59], v5, s[48:51], 0 offen")
            k.label("prep_nocnt")
        k("s_waitcnt lgkmcnt(0)")
        k("s_barrier")
        k("v_and_b32 v5, 15, v0")
        k("v_bfe_u32 v6, v0, 4, 2")
        k("v_lshrrev_b32 v7, 2, v5")
        k("v_lshl_add_u32 v7, v6, 3, v7")
        k(f"v_mul_u32_u24 v7, {RS}, v7")
        k("v_and_b32 v4, 3, v0")
        k("v_lshl_add_u32 v7, v4, 3, v7")
        k("v_lshl_add_u32 v7, v2, 8, v7")
        for it in range(8):
            k(f"ds_read_b64_tr_b16 {v(DAT + 4 * it, 2)}, v7 offset:{32 * it}")
            k(f"ds_read_b64_tr_b16 {v(DAT + 4 * it + 2, 2)}, v7 offset:{32 * it + 4 * RS}")
        if is_x0:
            k("v_lshl_add_u32 v4, v2, 7, v5")
            k("v_lshlrev_b32 v4, 8, v4")
            k("v_lshl_add_u32 v4, v6, 4, v4")
            k("v_add_u32 v4, s6, v4")
            step = 16 * 256
        else:
            k(f"v_mul_u32_u24 v4, {8 * NKS2 * 1024}, v2")
            k("v_lshl_add_u32 v4, v3, 4, v4")
            k("v_add_u32 v4, s6, v4")
            step = NKS2 * 1024
        for it in range(8):
            k(f"s_waitcnt lgkmcnt({14 - 2 * it})")
            k(f"buffer_store_dwordx4 {v(DAT + 4 * it, 4)}, v4, s[8:11], 0 offen")
            if it < 7:
                k(f"v_add_u32 v4, {step}, v4")
        if k.diag:
            k.nstamp = 2
            for _ in range(4):
                k.stamp()
            k.stamp(real=True)
            k.dump_stamps(40, WS_DIAG)
        k.tl_end(40, WS_DIAG)
        k("s_endpgm")

    k("s_waitcnt lgkmcnt(0)")
    k(f"s_sub_u32 s3, s2, {N_KGEN}")
    k("s_lshl_b32 s4, s3, 15")
    k("s_lshl_b32 s5, s3, 8")
    k("s_lshr_b32 s6, s3, 2")
    k("s_lshl_b32 s6, s6, 17")
    k("s_and_b32 s7, s3, 3")
    k("s_lshl_b32 s7, s7, 6")
    k("s_add_u32 s6, s6, s7")
    k.srd(8, 40, WS_X0T, XT_BYTES)
    k.srd(44, 40, WS_ST0, ST_BYTES)
    k.srd(48, 40, WS_ST2, ST_BYTES)
    transpose32(True)

    k.label("prep_not_x0")
    k.fence(2)
    k(f"s_cmp_ge_u32 s2, {N_KGEN + N_X0 + N_W1}")
    k("s_cbranch_scc1 prep_w2")

    k("s_waitcnt lgkmcnt(0)")
    k(f"s_sub_u32 s3, s2, {N_KGEN + N_X0}")
    k("s_lshr_b32 s4, s3, 1")
    k("s_and_b32 s5, s3, 1")
    wbytes = D * F * 2
    k("s_cmp_ge_u32 s4, 43")
    k(f"s_cselect_b32 s6, 0, {wbytes}")
    k.srd(8, 32, 0, 0)
    k("s_mov_b32 s10, s6")
    k.srd(12, 34, 0, 0)
    k("s_mov_b32 s14, s6")
    k.srd(44, 40, WS_W1, W1_BYTES)
    k.srd(48, 40, WS_CS, 2 * CS_HALF)
    RS1 = 144
    k("s_cmp_lg_u32 s4, 43")
    k("s_cbranch_scc1 prep_w1_noones")
    for q in range(4):
        k(f"v_mov_b32 {v(8 + q)}, 0x{ONES_BF16:08x}")
    k("v_lshlrev_b32 v1, 4, v0")
    k("s_lshl_b32 s6, s5, 13")
    k(f"s_add_u32 s6, s6, {NPT * 16384}")
    k("buffer_store_dwordx4 v[8:11], v1, s[44:47], s6 offen")
    k("s_add_u32 s6, s6, 4096")
    k("buffer_store_dwordx4 v[8:11], v1, s[44:47], s6 offen")
    k("s_waitcnt vmcnt(0)")
    k.label("prep_w1_noones")
    k.fence(2)
    k(f"s_mul_i32 s6, s5, {256 * F * 2}")
    k("s_lshl_b32 s7, s4, 6")
    k("s_add_u32 s6, s6, s7")
    k("v_lshrrev_b32 v2, 2, v0")
    k("v_and_b32 v3, 3, v0")
    k(f"v_mul_u32_u24 v1, {F * 2}, v2")
    k("v_lshl_add_u32 v1, v3, 4, v1")
    GA, UA, TI = 8, 24, 40
    for j in range(4):
        if j:
            k(f"s_add_u32 s6, s6, {64 * F * 2}")
        k(f"buffer_load_dwordx4 {v(GA + 4 * j, 4)}, v1, s[8:11], s6 offen")
        k(f"buffer_load_dwordx4 {v(UA + 4 * j, 4)}, v1, s[12:15], s6 offen")
    k(f"v_mul_u32_u24 v4, {RS1}, v2")
    k("v_lshl_add_u32 v4, v3, 5, v4")
    for j in range(4):
        k(f"s_waitcnt vmcnt({6 - 2 * j})")
        for q in range(4):
            k(f"v_mov_b32 {v(TI + 8 * (j & 1) + 2 * q)}, {v(GA + 4 * j + q)}")
            k(f"v_mov_b32 {v(TI + 8 * (j & 1) + 2 * q + 1)}, {v(UA + 4 * j + q)}")
        k(f"ds_write_b128 v4, {v(TI + 8 * (j & 1), 4)} offset:{64 * j * RS1}")
        k(f"ds_write_b128 v4, {v(TI + 8 * (j & 1) + 4, 4)} offset:{64 * j * RS1 + 16}")
    k("s_waitcnt lgkmcnt(0)")
    k("s_barrier")
    k("v_lshrrev_b32 v2, 6, v0")
    k("v_and_b32 v5, 15, v0")
    k("v_bfe_u32 v6, v0, 4, 2")
    k("v_lshrrev_b32 v7, 2, v5")
    k("v_lshl_add_u32 v7, v6, 3, v7")
    k(f"v_mul_u32_u24 v7, {RS1}, v7")
    k("v_lshl_add_u32 v7, v3, 3, v7")
    k("v_lshl_add_u32 v7, v2, 5, v7")
    for ks in range(8):
        k(f"ds_read_b64_tr_b16 {v(GA + 4 * ks, 2)}, v7 offset:{32 * ks * RS1}")
        k(f"ds_read_b64_tr_b16 {v(GA + 4 * ks + 2, 2)}, v7 offset:{32 * ks * RS1 + 4 * RS1}")
    k("s_lshl_b32 s6, s4, 16")
    k("s_lshl_b32 s7, s5, 13")
    k("s_add_u32 s6, s6, s7")
    k("v_and_b32 v3, 63, v0")
    k("v_lshlrev_b32 v4, 14, v2")
    k("v_lshl_add_u32 v4, v3, 4, v4")
    k("v_add_u32 v1, 0x1000, v4")
    k(f"s_mov_b32 s7, 0x{ONES_BF16:08x}")
    k(f"v_mov_b32 {v(TI)}, 0")
    for ks in range(8):
        k(f"s_waitcnt lgkmcnt({14 - 2 * ks})")
        base = "v4" if ks < 4 else "v1"
        k(f"buffer_store_dwordx4 {v(GA + 4 * ks, 4)}, {base}, s[44:47], s6 offen offset:{(ks & 3) * 1024}")
        for q in range(4):
            k(f"v_dot2_f32_bf16 {v(TI)}, {v(GA + 4 * ks + q)}, s7, {v(TI)}")
    row4_sum(k, TI, TI + 1)
    k(f"s_mul_i32 s6, s5, {CS_HALF}")
    k("s_lshl_b32 s7, s4, 8")
    k("s_add_u32 s6, s6, s7")
    k("v_lshlrev_b32 v4, 6, v2")
    k("v_lshl_add_u32 v4, v5, 2, v4")
    k("v_cmp_gt_u32 vcc, 16, v3")
    k("s_and_saveexec_b64 s[14:15], vcc")
    k(f"buffer_store_dword {v(TI)}, v4, s[48:51], s6 offen")
    if k.diag:
        k.nstamp = 2
        for _ in range(4):
            k.stamp()
        k.stamp(real=True)
        k.dump_stamps(40, WS_DIAG)
    k.tl_end(40, WS_DIAG)
    k("s_endpgm")

    k.label("prep_w2")
    k.fence(2)
    k("s_waitcnt lgkmcnt(0)")
    k(f"s_sub_u32 s3, s2, {N_KGEN + N_X0 + N_W1}")
    k("s_lshl_b32 s4, s3, 15")
    k("s_lshl_b32 s6, s3, 10")
    k.srd(8, 40, WS_W2, W2_BYTES)
    transpose32(False)

    k.label("prep_done")
    k("s_endpgm")
    return k


def build(kernels, launches, path):
    hdr = open("interleave_layers__ssm_conv_s4__swiglu_ffn__prompt.s.ref").read().split("\n")
    out = []
    for line in hdr:
        if line.startswith("; Override") or line.startswith("; grid=") or "@launch" in line:
            continue
        if not line.startswith(";"):
            break
        out.append(line)
    for (name, grid, block, lds) in launches:
        out.append(f"; @launch kernel={name} grid=({grid},1,1) block=({block},1,1) lds={lds}")
    out.append('.amdgcn_target "amdgcn-amd-amdhsa--gfx950"')
    out.append(".text")
    for k in kernels:
        out.append(k.text())
    out.append('.section .rodata,"a"')
    for k in kernels:
        for dsc in k.descriptors():
            out.append(".p2align 6")
            out.append(dsc)
    open(path, "w").write("\n".join(out))


if __name__ == "__main__":
    kernels = [gen_prep()]
    launches = [("prep_kernel", PREP_GRID, 512, PREP_LDS)]
    try:
        import gen2
        gen2.extend(kernels, launches)
    except ImportError:
        pass
    path = sys.argv[1] if len(sys.argv) > 1 else "interleave_layers__ssm_conv_s4__swiglu_ffn__prompt.s"
    build(kernels, launches, path)
    for k in kernels:
        print(k.name, "vgpr", k.maxv + 1, "agpr", k.maxa + 1, "sgpr", k.maxs + 1, "lines", len(k.lines))
```
